```python
import torch

def _softmax(x, axis=-1):
    return torch.softmax(x, dim=axis)
def _gelu(x):
    return torch.nn.functional.gelu(x, approximate="tanh")
def _silu(x):
    return torch.nn.functional.silu(x)
def _sigmoid(x):
    return torch.sigmoid(x)
def _layernorm(x, axis=-1, eps=1e-5):
    m = x.mean(dim=axis, keepdim=True)
    v = x.var(dim=axis, keepdim=True, unbiased=False)
    return (x - m) / torch.sqrt(v + eps)
def _scatter_add(tgt, idx, src, axis=0):
    return tgt.clone().index_add_(axis, idx, src)
def _segment_sum(src, seg, n):
    out = torch.zeros((n,) + src.shape[1:], dtype=src.dtype)
    return out.index_add_(0, seg, src)
def _pad(x, pw):
    flat = tuple(v for pair in reversed(pw) for v in pair)
    return torch.nn.functional.pad(x, flat)

kernel_name = 'sequential_preLN__grouped_kv_mqa__glu_gated_bilinear__prompt'

def setup_inputs():

    _w = (lambda a: (lambda t: t.to(torch.bfloat16) if t.is_floating_point() else t)(torch.as_tensor(a)))
    def _A_setup():
        B, S, D, H = 1, 2048, 576, 32
        Dh = D // H
        return {
            "x": _w((lambda *s: torch.randn(*s, dtype=torch.bfloat16) * 0.05)(B, S, D)),
            "wq": _w((lambda *s: torch.randn(*s, dtype=torch.bfloat16) * 0.05)(D, H * Dh)),
            "wk": _w((lambda *s: torch.randn(*s, dtype=torch.bfloat16) * 0.05)(D, Dh)),
            "wv": _w((lambda *s: torch.randn(*s, dtype=torch.bfloat16) * 0.05)(D, Dh)),
            "wo": _w((lambda *s: torch.randn(*s, dtype=torch.bfloat16) * 0.05)(H * Dh, D)),
        }
    _A_in = _A_setup()

    def _B_setup():
        B, S, D, F = 1, 2048, 576, 4608
        return {
            "x": _w((lambda *s: torch.randn(*s, dtype=torch.bfloat16) * 0.05)(B, S, D)),
            "w_gate": _w((lambda *s: torch.randn(*s, dtype=torch.bfloat16) * 0.4)(D, F) * (D ** -0.5)),
            "w_up": _w((lambda *s: torch.randn(*s, dtype=torch.bfloat16) * 0.4)(D, F) * (D ** -0.5)),
            "w_down": _w((lambda *s: torch.randn(*s, dtype=torch.bfloat16) * 0.4)(F, D) * (F ** -0.5)),
        }
    _B_in = _B_setup()

    return {
        "A_x": _A_in["x"],
        "A_wq": _A_in["wq"],
        "A_wk": _A_in["wk"],
        "A_wv": _A_in["wv"],
        "A_wo": _A_in["wo"],
        "B_x": _B_in["x"],
        "B_w_gate": _B_in["w_gate"],
        "B_w_up": _B_in["w_up"],
        "B_w_down": _B_in["w_down"],
    }

def reference(A_x, A_wq, A_wk, A_wv, A_wo, B_x, B_w_gate, B_w_up, B_w_down):
    def _A_ref(x, wq, wk, wv, wo):
        B, S, D = x.shape
        H = 32
        Dh = D // H
        q = (lambda x, *d: x.permute(*d))((x @ wq).reshape(B, S, H, Dh), 0, 2, 1, 3)
        k = x @ wk
        v = x @ wv
        scores = torch.einsum("bhqd,bkd->bhqk", q, k) * (Dh ** -0.5)
        p = _softmax(scores, axis=-1)
        o = torch.einsum("bhqk,bkd->bhqd", p, v)
        return (lambda x, *d: x.permute(*d))(o, 0, 2, 1, 3).reshape(B, S, H * Dh) @ wo

    def _B_ref(x, w_gate, w_up, w_down):
        g = torch.einsum("bsd,df->bsf", x, w_gate)
        u = torch.einsum("bsd,df->bsf", x, w_up)
        h = g * u
        return torch.einsum("bsf,fd->bsd", h, w_down)

    x = A_x
    h = x + _A_ref(_layernorm(x, axis=-1), A_wq, A_wk, A_wv, A_wo)
    h2 = h + _B_ref(_layernorm(h, axis=-1), B_w_gate, B_w_up, B_w_down)
    return h2
```

```python
import re

TRANS = ("v_exp_f32","v_log_f32","v_rcp_f32","v_rsq_f32","v_sqrt_f32","v_sin_f32","v_cos_f32","v_exp_f16","v_rcp_iflag_f32")

def regs_of(tok):
    tok = tok.strip()
    m = re.fullmatch(r"-?\|?([vas])(\d+)\|?", tok)
    if m: return {(m.group(1), int(m.group(2)))}
    m = re.fullmatch(r"-?([vas])\[(\d+):(\d+)\]", tok)
    if m: return {(m.group(1), i) for i in range(int(m.group(2)), int(m.group(3))+1)}
    if tok == "vcc": return {("s","vcc")}
    if tok == "exec": return {("s","exec")}
    if tok == "m0": return {("s","m0")}
    return set()

class Ins:
    __slots__=("text","op","kind","w","r","passes","srcC","nopn","islabel","target","store_data","srcAB")
    def __init__(self, text):
        self.text=text
        self.islabel=False; self.target=None; self.nopn=0; self.passes=0
        self.w=set(); self.r=set(); self.srcC=set(); self.srcAB=set(); self.store_data=set()
        t=text.strip()
        if t.endswith(":"):
            self.islabel=True; self.op=t[:-1]; self.kind="label"; return
        parts=t.split(None,1)
        op=parts[0]; self.op=op
        rest=parts[1] if len(parts)>1 else ""
        ops=[x.strip() for x in rest.split(",")] if rest else []
        clean=[]
        for o in ops:
            clean.append(o.split()[0] if o.split() else o)
        R=lambda i: regs_of(clean[i]) if i<len(clean) else set()
        if op.startswith("v_mfma"):
            self.kind="mfma"
            self.passes = 8 if "32x32" in op else 4
            self.w=R(0); self.srcAB=R(1)|R(2); self.srcC=R(3); self.r=self.srcAB|self.srcC
        elif op.startswith("v_"):
            self.kind="trans" if op in TRANS else "valu"
            if op.startswith("v_cmp"):
                self.w=R(0); self.r=R(1)|R(2)
            elif op.startswith("v_permlane") and "swap" in op:
                self.w=R(0)|R(1); self.r=R(0)|R(1); self.kind="permlane"
            elif op in ("v_readfirstlane_b32","v_readlane_b32"):
                self.w=R(0); self.r=R(1)|R(2); self.kind="readlane"
            elif op.startswith(("v_add_co","v_sub_co","v_addc_co","v_subb_co")):
                self.w=R(0)|R(1); self.r=set().union(*[R(i) for i in range(2,len(clean))])
            else:
                self.w=R(0); self.r=set().union(*[R(i) for i in range(1,len(clean))]) if len(clean)>1 else set()
                if op.startswith(("v_fmac","v_dot2c","v_mac")) : self.r|=R(0)
                if op.startswith("v_cndmask") and len(clean)==3: self.r|={("s","vcc")}
                if "dpp" in t or "row_" in t or "quad_perm" in t: self.kind="dpp"; self.r|=R(0)
                if op=="v_accvgpr_write_b32" or op=="v_accvgpr_read_b32" or op=="v_accvgpr_mov_b32": pass
        elif op.startswith(("buffer_","global_")):
            self.kind="vmem"
            lds = " lds" in (" "+t)
            if "load" in op and not lds:
                self.w=R(0); self.r=set().union(*[R(i) for i in range(1,len(clean))])
            elif "load" in op and lds:
                self.r=set().union(*[R(i) for i in range(0,len(clean))])|{("s","m0")}
                self.kind="vmem_lds"
            elif "store" in op:
                if op.startswith("buffer_"):
                    self.store_data=R(0)
                else:
                    self.store_data=R(1)
                self.r=set().union(*[R(i) for i in range(0,len(clean))])
                if not ("x3" in op or "x4" in op): self.store_data=set()
            elif "atomic" in op:
                self.r=set().union(*[R(i) for i in range(0,len(clean))])
                if " sc0" in t: self.w=R(0)
            else:
                pass
        elif op.startswith("ds_"):
            self.kind="ds"
            if "read" in op or "swizzle" in op or "bpermute" in op or "permute" in op:
                self.w=R(0); self.r=set().union(*[R(i) for i in range(1,len(clean))])
            else:
                self.r=set().union(*[R(i) for i in range(0,len(clean))])
        elif op=="s_nop":
            self.kind="nop"; self.nopn=int(clean[0],0)
        elif op.startswith(("s_cbranch","s_branch")):
            self.kind="branch"; self.target=clean[0]
        elif op.startswith(("s_load","s_memtime","s_memrealtime","s_buffer_load")):
            self.kind="smem"; self.w=R(0); self.r=R(1)
        elif op.startswith("s_"):
            self.kind="salu"
            if op.startswith(("s_cmp","s_waitcnt","s_barrier","s_endpgm","s_setprio","s_sleep")):
                self.r=set().union(*[R(i) for i in range(0,len(clean))]) if clean else set()
            else:
                self.w=R(0); self.r=set().union(*[R(i) for i in range(1,len(clean))]) if len(clean)>1 else set()
                if "saveexec" in op: self.w|={("s","exec")}
        else:
            raise ValueError("unknown op "+t)
    def slots(self):
        if self.kind=="label": return 0
        if self.kind=="nop": return self.nopn+1
        return 1

def isvalu(i): return i.kind in ("valu","trans","permlane","readlane","dpp")
def vg(s): return {x for x in s if x[0] in "va"}
def sg(s): return {x for x in s if x[0]=="s"}

def need(p, c):
    n=0
    if isvalu(p):
        pw=vg(p.w); ps=sg(p.w)
        if c.kind=="mfma" and pw & c.r: n=max(n,2)
        if p.kind=="trans" and isvalu(c) and c.kind!="trans" and pw & c.r: n=max(n,1)
        if p.kind=="trans" and c.kind=="trans" and pw & c.r: n=max(n,1)
        if c.kind=="readlane" and pw & c.r: n=max(n,1)
        if c.kind in("permlane","dpp") and pw & (c.r|c.w): n=max(n,2)
        if ps:
            if isvalu(c) and ps & c.r: n=max(n,2 if c.kind!="readlane" else 4)
            if c.kind in("vmem","vmem_lds") and ps & c.r: n=max(n,5)
            if c.kind in("salu","branch","smem") and ps & c.r: n=max(n,2)
            if c.kind=="branch" and ("s","vcc") in ps and "vcc" in c.op: n=max(n,5)
    if p.kind=="mfma":
        hi = p.passes==8
        if c.kind=="mfma":
            if p.w & c.srcC:
                if p.w==c.srcC and p.op==c.op: pass
                else: n=max(n,10 if hi else 6)
            if p.w & c.srcAB: n=max(n,12 if hi else 8)
            if p.w & c.w and not (p.w==c.srcC and p.op==c.op) and not (p.w & c.srcC): n=max(n,10 if hi else 6)
        elif isvalu(c):
            if p.w & (c.r|c.w): n=max(n,12 if hi else 8)
            if p.srcC & vg(c.w): n=max(n,7 if hi else 3)
        elif c.kind in("vmem","vmem_lds","ds"):
            if p.w & (c.r|c.w): n=max(n,12 if hi else 8)
    if p.kind=="vmem" and p.store_data and isvalu(c) and p.store_data & vg(c.w): n=max(n,2)
    if p.kind=="vmem" and p.store_data and c.kind in("vmem","ds","mfma") and p.store_data & vg(c.w): n=max(n,1)
    if p.kind=="salu" and ("s","m0") in p.w and c.kind=="vmem_lds": n=max(n,1)
    return n

class Asm:
    def __init__(self):
        self.ins=[]
        self.vm=0
        self.lg=0
        self.uid=0
    def __call__(self, text):
        for l in text.split("\n"):
            l=l.split(";")[0].split("//")[0].strip()
            if not l: continue
            i=Ins(l)
            self.ins.append(i)
            if i.kind in("vmem","vmem_lds") and not i.op.startswith(("buffer_inv","buffer_wbl2")): self.vm+=1
            if i.kind=="ds": self.lg+=1
        return self
    def label(self,name): self.ins.append(Ins(name+":"))
    def newlabel(self,p="L"):
        self.uid+=1; return f"{p}_{self.uid}"
    def vtok(self): return self.vm
    def ltok(self): return self.lg
    def wait_vm(self,tok):
        n=self.vm-tok
        self(f"s_waitcnt vmcnt({min(n,63)})")
    def wait_lg(self,tok):
        n=self.lg-tok
        self(f"s_waitcnt lgkmcnt({min(n,15)})")
    def finalize(self):
        out=[]
        def req(prev, c):
            k=0; dist=0
            for p in reversed(prev):
                if p.kind=="label": continue
                n=need(p,c)
                if n>dist: k=max(k,n-dist)
                dist+=p.slots()
                if dist>=20: break
            return k
        for c in self.ins:
            if c.kind!="label":
                k=req(out,c)
                while k>0:
                    m=min(k,16)
                    out.append(Ins(f"s_nop {m-1}")); k-=m
            out.append(c)
        labpos={c.op:i for i,c in enumerate(out) if c.islabel}
        for i,c in enumerate(out):
            if c.kind=="branch" and c.target in labpos:
                prev=out[max(0,i-24):i+1]
                j=labpos[c.target]+1
                seq=list(prev); cnt=0
                while j<len(out) and cnt<20:
                    d=out[j]
                    if d.kind!="label":
                        k=req(seq,d)
                        if k>0:
                            raise RuntimeError(f"hazard across branch {c.text} -> {d.text}: need {k} more states")
                        cnt+=d.slots()
                        if d.kind=="branch" and d.op=="s_branch": break
                    seq.append(d); j+=1
        self.ins=out
    def text(self):
        s=""
        for i in self.ins:
            s+=(i.text+"\n") if i.islabel else ("    "+i.text+"\n")
        return s

def kernel_text(name, asm, vgpr=512, accum=256, sgpr=102):
    asm.finalize()
    return f""".text
.globl {name}
.p2align 8
.type {name},@function
{name}:
{asm.text()}.section .rodata,"a"
.p2align 6
.amdhsa_kernel {name}
  .amdhsa_next_free_vgpr {vgpr}
  .amdhsa_next_free_sgpr {sgpr}
  .amdhsa_accum_offset {accum}
  .amdhsa_group_segment_fixed_size 0
  .amdhsa_kernarg_size 96
  .amdhsa_user_sgpr_count 2
  .amdhsa_user_sgpr_kernarg_segment_ptr 1
  .amdhsa_system_sgpr_workgroup_id_x 1
.end_amdhsa_kernel
"""
```

```python
from asmlib import *
S=2048; D=576; H=32; DH=18; F=4608
ROWB=D*2
MAT=S*ROWB
A_X,A_WQ,A_WK,A_WV,A_WO,A_BX,A_WG,A_WU,A_WD,A_OUT,A_DBG,A_WS=[8*i for i in range(12)]
WS_Q=0
WS_KV=WS_Q+MAT
KF_OFF=0; KF2_OFF=65536; VF_OFF=73728; KV_BYTES=151552
WS_NORM=WS_KV+0x28000
WS_O=WS_NORM+0x1000
WS_H=WS_O+MAT
WS_W=WS_H+MAT
WSTREAM=486*1024
WS_PART=WS_W+32*WSTREAM
WS_END=WS_PART+8*MAT
QSCALE=(DH**-0.5)*1.4426950408889634
EPS=1e-5

import struct
def f2u(x): return struct.unpack("<I",struct.pack("<f",x))[0]

def load_ptr(a, sreg, karg):
    a(f"s_load_dwordx2 s[{sreg}:{sreg+1}], s[0:1], {karg}")

def mk_srd(a, srd, ptr, nbytes, off=0):
    if off:
        a(f"s_add_u32 s{srd}, s{ptr}, {off}")
        a(f"s_addc_u32 s{srd+1}, s{ptr+1}, 0")
    else:
        a(f"s_mov_b32 s{srd}, s{ptr}")
        a(f"s_mov_b32 s{srd+1}, s{ptr+1}")
    a(f"s_mov_b32 s{srd+2}, {nbytes}")
    a(f"s_mov_b32 s{srd+3}, 0x20000")

def xsum16(a, v, t):
    a(f"v_mov_b32 v{t}, v{v}")
    a(f"v_permlane16_swap_b32 v{v}, v{t}")
    a(f"v_add_f32 v{v}, v{v}, v{t}")
def xsum32(a, v, t):
    a(f"v_mov_b32 v{t}, v{v}")
    a(f"v_permlane32_swap_b32 v{v}, v{t}")
    a(f"v_add_f32 v{v}, v{v}, v{t}")
def xmax16(a, v, t):
    a(f"v_mov_b32 v{t}, v{v}")
    a(f"v_permlane16_swap_b32 v{v}, v{t}")
    a(f"v_max_f32 v{v}, v{v}, v{t}")
def xmax32(a, v, t):
    a(f"v_mov_b32 v{t}, v{v}")
    a(f"v_permlane32_swap_b32 v{v}, v{t}")
    a(f"v_max_f32 v{v}, v{v}, v{t}")
```

```python
from common import *
import os
NW=int(os.environ.get("ATT_NW","8"))
UNR=int(os.environ.get("ATT_UNR","4"))
K2_GRID=256; K2_BLOCK=64*NW; K2_LDS=152*1024; K2_VGPR=256 if NW==8 else 512; K2_ACC=256
QA0,QA2,QB0,QB2=16,20,24,28
OA,OB=32,48
SA,SB=64,80
PA,PB=96,104
K0=[112,116]; K2=[120,122]
VV=[[124,128],[132,136]]
BA,BB=144,160
BOUND2=3600.0

def mf16(d,a_,b_,c): return f"v_mfma_f32_32x32x16_bf16 v[{d}:{d+15}], v[{a_}:{a_+3}], v[{b_}:{b_+3}], {c}"
def mf8(d,a_,b_): return f"v_mfma_f32_32x32x8_bf16 v[{d}:{d+15}], v[{a_}:{a_+1}], v[{b_}:{b_+1}], v[{d}:{d+15}]"
def R16(d): return f"v[{d}:{d+15}]"

def valu_stream(Sx,Px):
    seq=[]
    e=lambda i: f"v_exp_f32 v{Sx+i}, v{Sx+i}"
    c=lambda j: f"v_cvt_pk_bf16_f32 v{Px+j}, v{Sx+2*j}, v{Sx+2*j+1}"
    seq=[e(0),e(1),e(2),c(0),e(3),e(4), c(1),e(5),e(6),c(2),e(7),e(8), c(3),e(9),e(10),c(4),e(11),e(12), c(5),e(13),e(14),e(15),c(6),c(7)]
    return [seq[0:6],seq[6:12],seq[12:18],seq[18:24]]

def phase(a, Sx,Px, Sy,Qy0,Qy2,By, kbuf, Oy,Py,vbuf, extra=None):
    g=valu_stream(Sx,Px)
    m=[mf16(Sy,K0[kbuf],Qy0,R16(By)), mf16(Oy,VV[vbuf][0],Py,R16(Oy)), mf8(Sy,K2[kbuf],Qy2), mf16(Oy,VV[vbuf][1],Py+4,R16(Oy))]
    for i in range(4):
        a(m[i])
        if extra and i<len(extra):
            for x in extra[i]: a(x)
        for x in g[i]: a(x)

def k2():
    a=Asm()
    NT=64 if NW==4 else 32
    a(f"s_cmp_ge_u32 s2, {K2_GRID}")
    a("s_cbranch_scc1 K2_END")
    load_ptr(a,44,A_WS)
    a("v_and_b32 v1, 63, v0")
    a("v_lshrrev_b32 v2, 6, v0")
    a("v_readfirstlane_b32 s30, v2")
    a("v_and_b32 v3, 31, v0")
    a("v_bfe_u32 v4, v0, 5, 1")
    a("s_lshr_b32 s31, s2, 3")
    a("s_and_b32 s32, s2, 7")
    a("s_and_b32 s33, s30, 3")
    a("s_lshl_b32 s32, s32, 2")
    a("s_add_u32 s32, s32, s33")
    a("s_lshr_b32 s34, s30, 2")
    a("s_waitcnt lgkmcnt(0)")
    mk_srd(a,8,44,KV_BYTES,WS_KV)
    mk_srd(a,12,44,MAT,WS_Q)
    mk_srd(a,16,44,MAT,WS_O)
    mk_srd(a,20,44,1024,WS_NORM)
    a("s_lshl_b32 s35, s31, 6")
    a("v_add_u32 v5, s35, v3")
    a(f"s_movk_i32 s36, {ROWB}")
    a("s_mul_i32 s37, s32, 36")
    a("v_lshlrev_b32 v6, 4, v4")
    a("v_add_u32 v6, s37, v6")
    a("v_mad_u32_u24 v6, v5, s36, v6")
    a("v_mov_b32 v9, 0x7fffffff")
    a("v_cmp_eq_u32 vcc, 0, v4")
    a("v_cndmask_b32 v7, v9, v6, vcc")
    a(f"buffer_load_dwordx4 v[{QA0}:{QA0+3}], v6, s[12:15], 0 offen")
    a(f"buffer_load_dword v{QA2}, v7, s[12:15], 0 offen offset:32")
    a(f"s_mov_b32 s38, {32*ROWB}")
    a(f"buffer_load_dwordx4 v[{QB0}:{QB0+3}], v6, s[12:15], s38 offen")
    a(f"buffer_load_dword v{QB2}, v7, s[12:15], s38 offen offset:32")
    a("v_lshlrev_b32 v8, 3, v1")
    a("buffer_load_dwordx2 v[10:11], v8, s[20:23], 0 offen")
    a("buffer_load_dwordx2 v[12:13], v8, s[20:23], 0 offen offset:512")
    qtok=a.vtok()
    a("v_lshlrev_b32 v8, 4, v1")
    a("s_lshl_b32 s40, s30, 10")
    nd=152//NW
    for i in range(nd):
        a("s_mov_b32 m0, s40")
        a("s_nop 0")
        a("buffer_load_dwordx4 v8, s[8:11], s40 offen lds")
        if i<nd-1: a(f"s_add_u32 s40, s40, {NW*1024}")
    a(f"v_mov_b32 v{QA2+1}, 0"); a(f"v_mov_b32 v{QB2+1}, 0")
    a(f"v_mov_b32 v{K2[0]+1}, 0"); a(f"v_mov_b32 v{K2[1]+1}, 0")
    for i in range(16):
        a(f"v_mov_b32 v{OA+i}, 0"); a(f"v_mov_b32 v{OB+i}, 0")
        a(f"v_mov_b32 v{BA+i}, 0"); a(f"v_mov_b32 v{BB+i}, 0")
    for i in range(8): a(f"v_mov_b32 v{PB+i}, 0")
    for i in range(4):
        a(f"v_mov_b32 v{VV[1][0]+i}, 0"); a(f"v_mov_b32 v{VV[1][1]+i}, 0")
    a(f"s_mul_i32 s41, s34, {NT}")
    a("s_lshl_b32 s42, s41, 10")
    a("v_add_u32 v14, s42, v8")
    a("s_lshl_b32 s42, s41, 7")
    a(f"s_add_u32 s42, s42, {KF2_OFF}")
    a("v_lshlrev_b32 v15, 2, v3")
    a("v_add_u32 v15, s42, v15")
    a("v_mov_b32 v140, v3")
    a("v_cmp_le_u32 vcc, 19, v3")
    a("v_cndmask_b32 v140, v140, 4, vcc")
    a("v_subrev_u32 v141, 20, v3")
    a("v_cmp_gt_u32 vcc, 8, v141")
    a("v_cndmask_b32 v140, v140, 0, vcc")
    a("v_lshlrev_b32 v140, 4, v140")
    a("v_mul_u32_u24 v141, 304, v4")
    a("v_add_u32 v140, v140, v141")
    a("s_mul_i32 s42, s41, 1216")
    a(f"s_add_u32 s42, s42, {VF_OFF}")
    a("v_add_u32 v140, s42, v140")
    a.wait_vm(qtok)
    a("v_max_f32 v10, v10, v11")
    a("v_max_f32 v12, v12, v13")
    for sh in (8,4,2,1):
        a(f"v_mov_b32_dpp v11, v10 row_ror:{sh} row_mask:0xf bank_mask:0xf")
        a(f"v_mov_b32_dpp v13, v12 row_ror:{sh} row_mask:0xf bank_mask:0xf")
        a("v_max_f32 v10, v10, v11")
        a("v_max_f32 v12, v12, v13")
    xmax16(a,10,11); xmax16(a,12,13); xmax32(a,10,11); xmax32(a,12,13)
    a("v_mov_b32 v142, 0"); a("v_mov_b32 v143, 0")
    for r in range(4):
        a(f"v_dot2c_f32_bf16 v142, v{QA0+r}, v{QA0+r}")
        a(f"v_dot2c_f32_bf16 v143, v{QB0+r}, v{QB0+r}")
    a(f"v_dot2c_f32_bf16 v142, v{QA2}, v{QA2}")
    a(f"v_dot2c_f32_bf16 v143, v{QB2}, v{QB2}")
    xsum32(a,142,11); xsum32(a,143,13)
    a("v_max_f32 v142, v142, v143")
    a("v_mul_f32 v142, v142, v10")
    a(f"s_mov_b32 s42, {f2u(BOUND2/1.03)}")
    a("v_cmp_nle_f32 vcc, v142, s42")
    a(f"s_mov_b32 s43, {f2u(1e12)}")
    a("v_cmp_nle_f32 s[46:47], v12, s43")
    a("s_or_b64 vcc, vcc, s[46:47]")
    a("s_waitcnt vmcnt(0)")
    a("s_barrier")
    if os.environ.get("ATT_FORCE_FB"): a("s_mov_b64 vcc, -1")
    a("s_cbranch_vccz K2_FAST")
    a("v_lshlrev_b32 v142, 4, v1")
    a(f"v_lshlrev_b32 v143, 2, v3")
    a(f"v_add_u32 v143, {KF2_OFF}, v143")
    a(f"v_mov_b32 v176, 0xff800000"); a(f"v_mov_b32 v177, 0xff800000")
    a("s_mov_b32 s44, 64")
    a.label("K2_FB")
    a(f"ds_read_b128 v[{K0[0]}:{K0[0]+3}], v142")
    a(f"ds_read_b32 v{K2[0]}, v143")
    a("s_waitcnt lgkmcnt(0)")
    a(mf16(SA,K0[0],QA0,"0")); a(mf16(SB,K0[0],QB0,"0"))
    a("s_nop 9")
    a(mf8(SA,K2[0],QA2)); a(mf8(SB,K2[0],QB2))
    a("v_add_u32 v142, 1024, v142"); a("v_add_u32 v143, 128, v143")
    a("s_nop 11")
    for i in range(0,16,2):
        a(f"v_max3_f32 v176, v{SA+i}, v{SA+i+1}, v176")
    for i in range(0,16,2):
        a(f"v_max3_f32 v177, v{SB+i}, v{SB+i+1}, v177")
    a("s_sub_u32 s44, s44, 1")
    a("s_cmp_lg_u32 s44, 0")
    a("s_cbranch_scc1 K2_FB")
    xmax32(a,176,178); xmax32(a,177,178)
    for i in range(16):
        a(f"v_sub_f32 v{BA+i}, 0, v176"); a(f"v_sub_f32 v{BB+i}, 0, v177")
    a.label("K2_FAST")
    a(f"ds_read_b128 v[{K0[0]}:{K0[0]+3}], v14")
    a(f"ds_read_b32 v{K2[0]}, v15")
    a("s_waitcnt lgkmcnt(0)")
    a(mf16(SA,K0[0],QA0,R16(BA)))
    a("s_nop 9")
    a(mf8(SA,K2[0],QA2))
    a("s_nop 7")
    a(f"s_mov_b32 s44, {NT//UNR}")
    a.label("K2_LOOP")
    for u in range(UNR):
        b=u&1
        ex=[[f"ds_read_b128 v[{K0[b^1]}:{K0[b^1]+3}], v14 offset:{(u+1)*1024}"],
            [f"ds_read_b128 v[{VV[b][0]}:{VV[b][0]+3}], v140 offset:{u*1216}"],
            [f"ds_read_b32 v{K2[b^1]}, v15 offset:{(u+1)*128}"],
            [f"ds_read_b128 v[{VV[b][1]}:{VV[b][1]+3}], v140 offset:{u*1216+608}"]]
        phase(a, SA,PA, SB,QB0,QB2,BB, b, OB,PB,b^1, ex)
        a("s_waitcnt lgkmcnt(0)")
        ex=None
        if u==UNR-1:
            ex=[[f"v_add_u32 v14, {UNR*1024}, v14"],[f"v_add_u32 v15, {UNR*128}, v15"],[f"v_add_u32 v140, {UNR*1216}, v140"],["s_sub_u32 s44, s44, 1","s_cmp_lg_u32 s44, 0"]]
        phase(a, SB,PB, SA,QA0,QA2,BA, b^1, OA,PA,b, ex)
    a("s_cbranch_scc1 K2_LOOP")
    b=(UNR-1)&1
    a("s_nop 1")
    a(mf16(OB,VV[b][0],PB,R16(OB))); a(mf16(OB,VV[b][1],PB+4,R16(OB)))
    if NW==8:
        a("s_barrier")
        a("s_lshl_b32 s42, s33, 13")
        a("v_lshlrev_b32 v8, 4, v1")
        a("v_add_u32 v8, s42, v8")
        a("s_cmp_eq_u32 s34, 0")
        a("s_cbranch_scc1 K2_LOW")
        a("s_nop 7")
        for i in range(4):
            a(f"ds_write_b128 v8, v[{OA+4*i}:{OA+4*i+3}] offset:{i*1024}")
            a(f"ds_write_b128 v8, v[{OB+4*i}:{OB+4*i+3}] offset:{4096+i*1024}")
        a("s_waitcnt lgkmcnt(0)")
        a("s_barrier")
        a("s_endpgm")
        a.label("K2_LOW")
        a("s_barrier")
        for i in range(4):
            a(f"ds_read_b128 v[{SA+4*i}:{SA+4*i+3}], v8 offset:{i*1024}")
            a(f"ds_read_b128 v[{SB+4*i}:{SB+4*i+3}], v8 offset:{4096+i*1024}")
        a("s_waitcnt lgkmcnt(0)")
        for i in range(16):
            a(f"v_add_f32 v{OA+i}, v{OA+i}, v{SA+i}")
            a(f"v_add_f32 v{OB+i}, v{OB+i}, v{SB+i}")
    for (O,T,so) in ((OA,96,"0"),(OB,104,"s38")):
        a(f"v_mov_b32 v10, v{O+10}"); a(f"v_mov_b32 v11, v{O+10}")
        a("v_permlane32_swap_b32 v10, v11")
        a("v_rcp_f32 v10, v10")
        for i in range(10): a(f"v_mul_f32 v{O+i}, v10, v{O+i}")
        for j in range(5): a(f"v_cvt_pk_bf16_f32 v{T+j}, v{O+2*j}, v{O+2*j+1}")
        a(f"v_permlane32_swap_b32 v{T}, v{T+2}")
        a(f"v_permlane32_swap_b32 v{T+1}, v{T+3}")
        a(f"buffer_store_dwordx4 v[{T}:{T+3}], v6, s[16:19], {so} offen")
        a(f"buffer_store_dword v{T+4}, v7, s[16:19], {so} offen offset:32")
    a.label("K2_END")
    a("s_endpgm")
    return a
```

```python
from common import *
import os
K4_LDS=147456
T_BASE=73728
RING=54
K5_GRID=192
PACK_GRID=540

def pack_wgu_task(a, blk_s, ks_s, vb=32):
    a("v_and_b32 v2, 15, v1")
    a("v_bfe_u32 v3, v1, 4, 1")
    a("v_lshrrev_b32 v4, 5, v1")
    a(f"s_mul_i32 s50, s{ks_s}, {16*F*2}")
    a(f"s_lshl_b32 s51, s{blk_s}, 8")
    a("s_add_u32 s50, s50, s51")
    a(f"v_mul_u32_u24 v5, {8*F*2}, v4")
    a("v_lshl_add_u32 v5, v2, 4, v5")
    a("v_add_u32 v5, s50, v5")
    a("v_mov_b32 v6, s40"); a("v_mov_b32 v7, s41")
    a("v_mov_b32 v8, s42"); a("v_mov_b32 v9, s43")
    a("v_cmp_eq_u32 vcc, 1, v3")
    a("v_cndmask_b32 v6, v6, v8, vcc")
    a("v_cndmask_b32 v7, v7, v9, vcc")
    a("v_add_co_u32 v6, vcc, v6, v5")
    a("v_addc_co_u32 v7, vcc, 0, v7, vcc")
    for i in range(8):
        a(f"global_load_dwordx4 v[{vb+4*i}:{vb+4*i+3}], v[6:7], off")
        if i<7:
            a(f"v_add_co_u32 v6, vcc, {F*2}, v6")
            a("v_addc_co_u32 v7, vcc, 0, v7, vcc")
    a("s_mov_b32 s52, 0x05040100"); a("s_mov_b32 s53, 0x07060302")
    a("v_lshlrev_b32 v5, 4, v1")
    a("s_waitcnt vmcnt(0)")
    ob=vb+32
    for e in range(8):
        for r in range(4):
            sel="s52" if (e&1)==0 else "s53"
            a(f"v_perm_b32 v{ob+4*e+r}, v{vb+4*(2*r+1)+(e>>1)}, v{vb+4*(2*r)+(e>>1)}, {sel}")
    for e in range(8):
        a(f"s_lshl_b32 s54, s{blk_s}, 3")
        a(f"s_add_u32 s54, s54, {e}")
        a("s_mul_hi_u32 s55, s54, 0x1c71c71d")
        a("s_mul_i32 s56, s55, 9")
        a("s_sub_u32 s56, s54, s56")
        a("s_mul_hi_u32 s57, s56, 0x55555556")
        a("s_mul_i32 s58, s57, 3")
        a("s_sub_u32 s58, s56, s58")
        a("s_mul_i32 s57, s57, 36")
        a(f"s_add_u32 s57, s57, s{ks_s}")
        a("s_mul_i32 s57, s57, 3")
        a("s_add_u32 s57, s57, s58")
        a("s_lshl_b32 s57, s57, 10")
        a(f"s_mul_i32 s55, s55, {WSTREAM}")
        a("s_add_u32 s57, s57, s55")
        a(f"buffer_store_dwordx4 v[{ob+4*e}:{ob+4*e+3}], v5, s[8:11], s57 offen")

def pack_wd_task(a, s_s, sg_s, nb_s, vb=32):
    a("v_and_b32 v2, 15, v1")
    a("v_lshrrev_b32 v4, 4, v1")
    a(f"s_lshr_b32 s50, s{sg_s}, 2")
    a("s_mul_i32 s50, s50, 9")
    a(f"s_and_b32 s51, s{sg_s}, 3")
    a("s_lshl_b32 s51, s51, 1")
    a("s_add_u32 s50, s50, s51")
    a("s_add_u32 s51, s50, 1")
    a(f"s_sub_u32 s54, s{sg_s}, 16")
    a("s_mul_i32 s54, s54, 18")
    a("s_add_u32 s54, s54, 8")
    a("s_add_u32 s55, s54, 9")
    a(f"s_cmp_lt_u32 s{sg_s}, 16")
    a("s_cselect_b32 s50, s50, s54")
    a("s_cselect_b32 s51, s51, s55")
    a(f"s_mul_i32 s54, s{s_s}, 36")
    a("s_add_u32 s50, s50, s54")
    a("s_add_u32 s51, s51, s54")
    for r in (50,51):
        a(f"s_lshr_b32 s54, s{r}, 3")
        a("s_lshl_b32 s54, s54, 7")
        a(f"s_and_b32 s{r}, s{r}, 7")
        a(f"s_add_u32 s{r}, s{r}, s54")
    a("v_mov_b32 v5, s50"); a("v_mov_b32 v6, s51")
    a("v_cmp_le_u32 vcc, 2, v4")
    a("v_cndmask_b32 v5, v5, v6, vcc")
    a("v_and_b32 v6, 1, v4")
    a("v_lshl_add_u32 v5, v6, 5, v5")
    a(f"v_mul_u32_u24 v5, {ROWB}, v5")
    a("v_mul_u32_u24 v6, 12, v2")
    a("v_add_u32 v5, v5, v6")
    a(f"s_mul_i32 s54, s{nb_s}, 192")
    for e in range(8):
        a(f"s_add_u32 s55, s54, {(64*(e>>2)+8*(e&3))*ROWB}")
        a(f"buffer_load_dwordx3 v[{vb+4*e}:{vb+4*e+2}], v5, s[12:15], s55 offen")
    a("s_mov_b32 s52, 0x05040100"); a("s_mov_b32 s53, 0x07060302")
    a("v_lshlrev_b32 v5, 4, v1")
    a("s_waitcnt vmcnt(0)")
    ob=vb+32
    for e in range(6):
        for r in range(4):
            sel="s52" if (e&1)==0 else "s53"
            a(f"v_perm_b32 v{ob+4*e+r}, v{vb+4*(2*r+1)+(e>>1)}, v{vb+4*(2*r)+(e>>1)}, {sel}")
    for e in range(6):
        a(f"s_mul_i32 s54, s{nb_s}, 6")
        a(f"s_add_u32 s54, s54, {e}")
        a("s_mul_hi_u32 s55, s54, 0x1c71c71d")
        a("s_mul_i32 s56, s55, 9")
        a("s_sub_u32 s56, s54, s56")
        a("s_mul_hi_u32 s57, s56, 0x55555556")
        a("s_mul_i32 s58, s57, 3")
        a("s_sub_u32 s58, s56, s58")
        a("s_mul_i32 s57, s57, 18")
        a(f"s_add_u32 s57, s57, s{sg_s}")
        a("s_mul_i32 s57, s57, 3")
        a("s_add_u32 s57, s57, s58")
        a("s_add_u32 s57, s57, 324")
        a("s_lshl_b32 s57, s57, 10")
        a(f"s_lshl_b32 s56, s{s_s}, 2")
        a("s_add_u32 s55, s55, s56")
        a(f"s_mul_i32 s55, s55, {WSTREAM}")
        a("s_add_u32 s57, s57, s55")
        a(f"buffer_store_dwordx4 v[{ob+4*e}:{ob+4*e+3}], v5, s[8:11], s57 offen")

def kpack():
    a=Asm()
    a(f"s_cmp_ge_u32 s2, {PACK_GRID}")
    a("s_cbranch_scc1 KP_END")
    load_ptr(a,40,A_WG); load_ptr(a,42,A_WU); load_ptr(a,44,A_WS); load_ptr(a,46,A_WD)
    a("v_and_b32 v1, 63, v0")
    a("v_lshrrev_b32 v2, 6, v0")
    a("v_readfirstlane_b32 s30, v2")
    a("s_lshl_b32 s31, s2, 2")
    a("s_add_u32 s31, s31, s30")
    a("s_waitcnt lgkmcnt(0)")
    mk_srd(a,8,44,32*WSTREAM,WS_W)
    mk_srd(a,12,46,F*D*2)
    a("s_cmp_ge_u32 s31, 1296")
    a("s_cbranch_scc1 KP_WD")
    a("s_mul_hi_u32 s32, s31, 0x71c71c8")
    a("s_mul_i32 s33, s32, 36")
    a("s_sub_u32 s33, s31, s33")
    pack_wgu_task(a,32,33)
    a("s_endpgm")
    a.label("KP_WD")
    a("s_sub_u32 s31, s31, 1296")
    a("s_mul_hi_u32 s32, s31, 0x2aaaaaab")
    a("s_mul_i32 s33, s32, 6")
    a("s_sub_u32 s33, s31, s33")
    a("s_mul_hi_u32 s34, s32, 0xe38e38f")
    a("s_mul_i32 s35, s34, 18")
    a("s_sub_u32 s35, s32, s35")
    pack_wd_task(a,34,35,33)
    a.label("KP_END")
    a("s_endpgm")
    return a

XF=[[16,20],[24,28]]
TF=[[16,20,24,28],[32,36,40,44]]
def ACC(set_,t,mt): return 64+set_*96+(t*2+mt)*16
def ACCB(set_,t,j): return 64+set_*48+(t*4+j)*4

def k4():
    a=Asm()
    a("s_cmp_ge_u32 s2, 256")
    a("s_cbranch_scc1 K4_END")
    load_ptr(a,44,A_WS)
    a("v_and_b32 v1, 63, v0")
    a("v_lshrrev_b32 v2, 6, v0")
    a("v_readfirstlane_b32 s30, v2")
    a("s_and_b32 s31, s2, 7")
    a("s_lshr_b32 s32, s2, 3")
    a("s_waitcnt lgkmcnt(0)")
    mk_srd(a,8,44,32*WSTREAM,WS_W)
    mk_srd(a,12,44,MAT,WS_H)
    mk_srd(a,16,44,8*MAT,WS_PART)
    a("v_and_b32 v3, 15, v1"); a("v_lshrrev_b32 v4, 4, v1")
    a("s_lshl_b32 s33, s32, 6"); a("s_lshl_b32 s34, s30, 4"); a("s_add_u32 s33, s33, s34")
    a("v_add_u32 v5, s33, v3")
    a(f"s_movk_i32 s36, {ROWB}")
    a("v_lshlrev_b32 v6, 4, v4")
    a("v_mad_u32_u24 v5, v5, s36, v6")
    HB=64
    for i in range(18):
        a(f"buffer_load_dwordx4 v[{HB+4*i}:{HB+4*i+3}], v5, s[12:15], 0 offen offset:{64*i}")
    htok=a.vtok()
    a("s_lshl_b32 s37, s31, 2"); a("s_add_u32 s37, s37, s30")
    a(f"s_mul_i32 s37, s37, {WSTREAM}")
    a("v_lshlrev_b32 v2, 4, v1")
    a("v_add_u32 v7, s37, v2")
    a("s_mov_b32 s40, 0")
    wtok={}
    NF=486
    state={"n":0}
    def issue_w():
        n=state["n"]
        if n>=NF: return
        slot=n%RING
        a(f"buffer_load_dwordx4 a[{4*slot}:{4*slot+3}], v7, s[8:11], s40 offen offset:{(n%4)*1024}")
        wtok[n]=a.vtok()
        if n%4==3: a("s_add_u32 s40, s40, 4096")
        state["n"]=n+1
    NPRE=44
    for i in range(NPRE): issue_w()
    a("v_mov_b32 v8, 0"); a("v_mov_b32 v9, 0"); a("v_mov_b32 v10, 0x3f803f80")
    a.wait_vm(htok)
    for i in range(72):
        a(f"v_dot2c_f32_bf16 v8, v{HB+i}, v10")
        a(f"v_dot2c_f32_bf16 v9, v{HB+i}, v{HB+i}")
    for i in range(RING-NPRE): issue_w()
    xsum16(a,8,11); xsum16(a,9,12); xsum32(a,8,11); xsum32(a,9,12)
    a(f"s_mov_b32 s38, {f2u(1.0/D)}")
    a("v_mul_f32 v8, s38, v8"); a("v_mul_f32 v9, s38, v9")
    a("v_fma_f32 v9, -v8, v8, v9")
    a("v_max_f32 v9, 0, v9")
    a(f"v_add_f32 v9, {f2u(EPS)}, v9")
    a("v_rsq_f32 v9, v9")
    a("v_mul_f32 v8, v8, v9")
    a("v_sub_f32 v8, 0, v8")
    a("v_add_u32 v11, s34, v3")
    a("v_lshrrev_b32 v12, 5, v11")
    a("v_mul_u32_u24 v12, 36864, v12")
    a("v_and_b32 v11, 31, v11")
    a("v_lshl_add_u32 v12, v11, 4, v12")
    a("v_lshrrev_b32 v11, 1, v4")
    a("v_lshl_add_u32 v12, v11, 10, v12")
    a("v_and_b32 v11, 1, v4")
    a("v_lshl_add_u32 v12, v11, 9, v12")
    for i in range(18):
        for r in range(4):
            d=HB+4*i+r
            a(f"v_lshlrev_b32 v13, 16, v{d}")
            a(f"v_and_b32 v14, 0xffff0000, v{d}")
            a(f"v_fma_f32 v13, v13, v9, v8")
            a(f"v_fma_f32 v14, v14, v9, v8")
            a(f"v_cvt_pk_bf16_f32 v{d}, v13, v14")
        a(f"ds_write_b128 v12, v[{HB+4*i}:{HB+4*i+3}] offset:{i*2048}")
    a("v_and_b32 v11, 31, v1")
    a("v_lshrrev_b32 v13, 4, v11")
    a("v_lshlrev_b32 v13, 10, v13")
    a("v_lshrrev_b32 v14, 5, v1")
    a("v_lshl_add_u32 v13, v14, 8, v13")
    a("v_and_b32 v11, 15, v11")
    a("v_lshl_add_u32 v13, v11, 4, v13")
    a("s_lshl_b32 s38, s30, 14"); a(f"s_add_u32 s38, s38, {T_BASE}")
    a("v_add_u32 v8, s38, v13")
    a("s_lshr_b32 s38, s30, 1"); a("s_add_u32 s38, s38, 16"); a("s_lshl_b32 s38, s38, 12")
    a("s_and_b32 s39, s30, 1"); a("s_lshl_b32 s39, s39, 9"); a("s_add_u32 s38, s38, s39"); a(f"s_add_u32 s38, s38, {T_BASE}")
    a("v_add_u32 v9, s38, v13")
    a("v_add_u32 v10, 36864, v2")
    a("s_waitcnt lgkmcnt(0)")
    a("s_barrier")
    def xread(buf,ks):
        a(f"ds_read_b128 v[{XF[buf][0]}:{XF[buf][0]+3}], v2 offset:{ks*1024}")
        a(f"ds_read_b128 v[{XF[buf][1]}:{XF[buf][1]+3}], v10 offset:{ks*1024}")
        return a.ltok()
    def epiA(p):
        g=[]
        for t in range(3):
            for mt in range(2):
                A=ACC(p&1,t,mt); c=3*p+t
                g.append([f"v_mul_f32 v{A+i}, v{A+i}, v{A+8+i}" for i in range(4)])
                g.append([f"v_mul_f32 v{A+i}, v{A+i}, v{A+8+i}" for i in range(4,8)])
                g.append([f"v_cvt_pk_bf16_f32 v{A+8+j}, v{A+2*j}, v{A+2*j+1}" for j in range(4)])
                if c<8: w=f"ds_write_b128 v8, v[{A+8}:{A+11}] offset:{mt*2048+(c>>1)*4096+(c&1)*512}"
                else:   w=f"ds_write_b128 v9, v[{A+8}:{A+11}] offset:{mt*2048}"
                g.append([w])
        return g
    step=0
    xt=xread(0,0)
    pend=[]
    for p in range(3):
        for ks in range(36):
            buf=step&1
            n0=(p*36+ks)*3
            a.wait_lg(xt)
            last=(p==2 and ks==35)
            if not last: xt_next=xread(buf^1,(ks+1)%36)
            a.wait_vm(wtok[n0+2])
            k=0
            for t in range(3):
                slot=(n0+t)%RING
                for mt in range(2):
                    A=ACC(p&1,t,mt); x=XF[buf][mt]
                    c="0" if ks==0 else f"v[{A}:{A+15}]"
                    a(f"v_mfma_f32_32x32x16_bf16 v[{A}:{A+15}], a[{4*slot}:{4*slot+3}], v[{x}:{x+3}], {c}")
                    k+=1
                    if k in (2,4,6): issue_w() if False else None
                    if pend and ks>=1 and k in (1,3,5):
                        grp=pend.pop(0)
                        lds_before=a.lg
                        for ins in grp: a(ins)
                        if a.lg!=lds_before and not last:
                            pass
            for t in range(3): issue_w()
            if not last:
                xt=xt_next
            step+=1
        pend=epiA(p)
    for grp in pend:
        for ins in grp: a(ins)
    pend=[]
    a(f"v_add_u32 v11, {T_BASE}, v2")
    a(f"v_add_u32 v12, {T_BASE+36864}, v2")
    a(f"s_mul_i32 s41, s31, {MAT}"); a(f"s_mul_i32 s42, s32, 73728"); a("s_add_u32 s41, s41, s42")
    a("s_mul_i32 s42, s30, 18432"); a("s_add_u32 s41, s41, s42")
    a("v_add_u32 v13, s41, v2")
    a("s_waitcnt lgkmcnt(0)")
    a("s_barrier")
    def tread(buf,sg):
        base,off=(11,sg*4096) if sg<9 else (12,(sg-9)*4096)
        for j in range(4):
            a(f"ds_read_b128 v[{TF[buf][j]}:{TF[buf][j]+3}], v{base} offset:{off+j*1024}")
        return a.ltok()
    def epiB(p):
        g=[]
        for t in range(3):
            for jp in range(2):
                A0=ACCB(p&1,t,2*jp); A1=ACCB(p&1,t,2*jp+1)
                g.append([f"v_cvt_pk_bf16_f32 v{A0}, v{A0}, v{A0+1}", f"v_cvt_pk_bf16_f32 v{A0+1}, v{A0+2}, v{A0+3}",
                          f"v_cvt_pk_bf16_f32 v{A0+2}, v{A1}, v{A1+1}", f"v_cvt_pk_bf16_f32 v{A0+3}, v{A1+2}, v{A1+3}"])
                idx=(p*3+t)*2+jp
                g.append([f"s_movk_i32 s43, {idx*1024}", f"buffer_store_dwordx4 v[{A0}:{A0+3}], v13, s[16:19], s43 offen"])
        return g
    step=0
    tt=tread(0,0)
    for p in range(3):
        for sg in range(18):
            buf=step&1
            n0=324+(p*18+sg)*3
            a.wait_lg(tt)
            last=(p==2 and sg==17)
            if not last: tt_next=tread(buf^1,(sg+1)%18)
            a.wait_vm(wtok[n0+2])
            k=0
            for t in range(3):
                slot=(n0+t)%RING
                for j in range(4):
                    A=ACCB(p&1,t,j); x=TF[buf][j]
                    c="0" if sg==0 else f"v[{A}:{A+3}]"
                    a(f"v_mfma_f32_16x16x32_bf16 v[{A}:{A+3}], a[{4*slot}:{4*slot+3}], v[{x}:{x+3}], {c}")
                    k+=1
                    if pend and sg>=1 and k in (3,7):
                        for ins in pend.pop(0): a(ins)
                issue_w()
            if not last: tt=tt_next
            step+=1
        pend=epiB(p)
    for grp in pend:
        for ins in grp: a(ins)
    a.label("K4_END")
    a("s_endpgm")
    return a

def k5():
    a=Asm()
    a(f"s_cmp_ge_u32 s2, {K5_GRID}")
    a("s_cbranch_scc1 K5_END")
    load_ptr(a,44,A_WS); load_ptr(a,46,A_OUT)
    a("v_and_b32 v1, 63, v0")
    a("v_lshrrev_b32 v2, 6, v0")
    a("v_readfirstlane_b32 s30, v2")
    a("s_mul_hi_u32 s33, s2, 0x2aaaaaab")
    a("s_mul_i32 s34, s33, 6"); a("s_sub_u32 s34, s2, s34")
    a("s_waitcnt lgkmcnt(0)")
    mk_srd(a,8,44,8*MAT,WS_PART)
    mk_srd(a,12,44,MAT,WS_H)
    mk_srd(a,16,46,MAT)
    a("s_mul_i32 s35, s33, 73728"); a("s_mul_i32 s36, s34, 12288"); a("s_add_u32 s35, s35, s36")
    a("s_lshr_b32 s36, s30, 1"); a("s_lshl_b32 s36, s36, 10"); a("s_add_u32 s35, s35, s36")
    a("s_and_b32 s36, s30, 1"); a("s_lshl_b32 s36, s36, 3"); a("s_add_u32 s35, s35, s36")
    a("v_lshlrev_b32 v2, 4, v1"); a("v_add_u32 v2, s35, v2")
    a("v_and_b32 v3, 15, v1"); a("v_lshrrev_b32 v4, 4, v1")
    a("s_lshl_b32 s36, s33, 6"); a("s_lshl_b32 s37, s30, 4"); a("s_add_u32 s36, s36, s37")
    a("v_add_u32 v3, s36, v3")
    a(f"s_movk_i32 s38, {ROWB}")
    a("v_mul_u32_u24 v4, 48, v4")
    a("s_mul_i32 s37, s34, 192"); a("v_add_u32 v4, s37, v4")
    a("v_mad_u32_u24 v3, v3, s38, v4")
    HB=8
    for i in range(3):
        a(f"buffer_load_dwordx4 v[{HB+4*i}:{HB+4*i+3}], v3, s[12:15], 0 offen offset:{16*i}")
    htok=a.vtok()
    PB=32
    toks={}
    for s in range(8):
        for e in range(6):
            q=PB+(s*6+e)*2
            a(f"s_mov_b32 s40, {s*MAT+e*2048}")
            a(f"buffer_load_dwordx2 v[{q}:{q+1}], v2, s[8:11], s40 offen")
        toks[s]=a.vtok()
    AC=128
    a("v_mov_b32 v5, 0x00003f80")
    a("v_mov_b32 v6, 0x3f800000")
    a.wait_vm(htok)
    for r in range(4):
        for e in range(0,6,2):
            d=HB+3*r+e//2
            a(f"v_lshlrev_b32 v{AC+4*e+r}, 16, v{d}")
            a(f"v_and_b32 v{AC+4*(e+1)+r}, 0xffff0000, v{d}")
    for s in range(8):
        a.wait_vm(toks[s])
        for e in range(6):
            q=PB+(s*6+e)*2
            a(f"v_dot2c_f32_bf16 v{AC+4*e}, v{q}, v5")
            a(f"v_dot2c_f32_bf16 v{AC+4*e+1}, v{q}, v6")
            a(f"v_dot2c_f32_bf16 v{AC+4*e+2}, v{q+1}, v5")
            a(f"v_dot2c_f32_bf16 v{AC+4*e+3}, v{q+1}, v6")
    O=8
    for r in range(4):
        for e in range(0,6,2):
            a(f"v_cvt_pk_bf16_f32 v{O+3*r+e//2}, v{AC+4*e+r}, v{AC+4*(e+1)+r}")
    for i in range(3):
        a(f"buffer_store_dwordx4 v[{O+4*i}:{O+4*i+3}], v3, s[16:19], 0 offen offset:{16*i}")
    a.label("K5_END")
    a("s_endpgm")
    return a
```

```python
from common import *
XB=16
WR=96
WF=224
SSQ=248
ONES=252
LDS_ACC=0; LDS_CS=73728; LDS_ST=98304
SPLITK_LDS=98304+8192

def gen_splitk(a, kind, rb_s, cb_s):
    NE = 4 if kind=='kv' else 6
    ln = kind!='o'
    if kind=='q':
        load_ptr(a,40,A_X); load_ptr(a,42,A_WQ); load_ptr(a,44,A_WS)
    elif kind=='kv':
        load_ptr(a,40,A_X); load_ptr(a,42,A_WK); load_ptr(a,46,A_WV); load_ptr(a,44,A_WS)
    else:
        load_ptr(a,42,A_WO); load_ptr(a,44,A_WS); load_ptr(a,46,A_X)
    a("v_and_b32 v1, 63, v0")
    a("v_lshrrev_b32 v2, 6, v0")
    a("v_and_b32 v3, 15, v0")
    a("v_readfirstlane_b32 s30, v2")
    a("v_bfe_u32 v4, v0, 4, 2")
    a("s_mul_i32 s31, s30, 5")
    a("s_cmp_eq_u32 s30, 3")
    a("s_cselect_b32 s32, 1, 0")
    a("s_sub_u32 s31, s31, s32")
    a("s_cmp_ge_u32 s30, 2")
    a("s_cselect_b32 s33, 0x40000000, 0")
    a("s_waitcnt lgkmcnt(0)")
    if kind=='o':
        mk_srd(a,8,44,MAT,WS_O)
        mk_srd(a,12,42,D*D*2)
        mk_srd(a,16,46,MAT)
        mk_srd(a,20,44,MAT,WS_H)
    elif kind=='q':
        mk_srd(a,8,40,MAT)
        mk_srd(a,12,42,D*D*2)
        mk_srd(a,20,44,MAT,WS_Q)
    else:
        mk_srd(a,8,40,MAT)
        mk_srd(a,12,42,D*DH*2)
        mk_srd(a,16,46,D*DH*2)
        mk_srd(a,20,44,KV_BYTES,WS_KV)
        mk_srd(a,24,44,1024,WS_NORM)
    a(f"s_lshl_b32 s34, s{rb_s}, 6")
    a("s_lshl_b32 s35, s31, 6")
    a("v_lshlrev_b32 v9, 4, v4")
    a("v_add_u32 v9, s35, v9")
    a(f"s_movk_i32 s36, {ROWB}")
    for t in range(4):
        a(f"s_add_u32 s37, s30, {t}")
        a("s_and_b32 s37, s37, 3")
        a("s_lshl_b32 s37, s37, 4")
        a("s_add_u32 s37, s37, s34")
        a("v_add_u32 v10, s37, v3")
        a(f"v_mad_u32_u24 v{5+t}, v10, s36, v9")
    if kind=='kv':
        a("v_mul_u32_u24 v11, 288, v4")
        a("v_lshl_add_u32 v11, v3, 2, v11")
        a("s_mul_i32 s37, s31, 1152")
        a("v_add_u32 v11, s37, v11")
    else:
        a(f"v_mul_u32_u24 v11, {8*ROWB}, v4")
        a("v_mul_u32_u24 v10, 12, v3")
        a("v_add_u32 v11, v11, v10")
        a(f"s_mul_i32 s37, s31, {32*ROWB}")
        a(f"s_mul_i32 s38, s{cb_s}, 192")
        a("s_add_u32 s37, s37, s38")
        a("v_add_u32 v11, s37, v11")
    xtok={}; wtok={}
    def load_x(j):
        for t in range(4):
            r=XB+16*j+4*t
            so = "s33" if j==4 else "0"
            a(f"buffer_load_dwordx4 v[{r}:{r+3}], v{5+t}, s[8:11], {so} offen offset:{64*j}")
        xtok[j]=a.vtok()
    def load_w(j):
        slot=j%4
        if kind=='kv':
            a(f"s_mov_b32 s39, {j*1152}")
            if j==4: a("s_add_u32 s39, s39, s33")
            for i in range(8):
                r=WR+32*slot+4*i
                a(f"buffer_load_dword v{r}, v11, s[12:15], s39 offen offset:{36*i}")
                a(f"buffer_load_dword v{r+1}, v11, s[16:19], s39 offen offset:{36*i}")
        else:
            for g in range(2):
                a(f"s_mov_b32 s39, {(32*j+4*g)*ROWB}")
                if j==4: a("s_add_u32 s39, s39, s33")
                for i in range(4):
                    r=WR+32*slot+4*(4*g+i)
                    a(f"buffer_load_dwordx3 v[{r}:{r+2}], v11, s[12:15], s39 offen offset:{ROWB*i}")
        wtok[j]=a.vtok()
    for j in range(4):
        load_x(j); load_w(j)
    load_x(4)
    a("s_mov_b32 s50, 0x05040100")
    a("s_mov_b32 s51, 0x07060302")
    if ln:
        for i in range(4): a(f"v_mov_b32 v{ONES+i}, 0x3f803f80")
        for i in range(4): a(f"v_mov_b32 v{SSQ+i}, 0")
    def acc(e,t): return (e*4+t)*4
    CS=96; RS=120
    for j in range(5):
        slot=j%4
        a.wait_vm(wtok[j])
        for e in range(NE):
            for r in range(4):
                if kind=='kv':
                    src=(e>>1); sel="s50" if (e&1)==0 else "s51"
                else:
                    src=(e>>1); sel="s50" if (e&1)==0 else "s51"
                s0=WR+32*slot+4*(2*r+1)+src; s1=WR+32*slot+4*(2*r)+src
                a(f"v_perm_b32 v{WF+4*e+r}, v{s0}, v{s1}, {sel}")
        if j==0: load_w(4)
        if j==4: pass
        a.wait_vm(xtok[j])
        for e in range(NE):
            for t in range(4):
                d=acc(e,t); x=XB+16*j+4*t
                c = "0" if j==0 else f"a[{d}:{d+3}]"
                a(f"v_mfma_f32_16x16x32_bf16 a[{d}:{d+3}], v[{WF+4*e}:{WF+4*e+3}], v[{x}:{x+3}], {c}")
            if ln:
                d=CS+4*e; c="0" if j==0 else f"a[{d}:{d+3}]"
                a(f"v_mfma_f32_16x16x32_bf16 a[{d}:{d+3}], v[{WF+4*e}:{WF+4*e+3}], v[{ONES}:{ONES+3}], {c}")
        if ln:
            for t in range(4):
                d=RS+4*t; x=XB+16*j+4*t; c="0" if j==0 else f"a[{d}:{d+3}]"
                a(f"v_mfma_f32_16x16x32_bf16 a[{d}:{d+3}], v[{ONES}:{ONES+3}], v[{x}:{x+3}], {c}")
                for r in range(4):
                    a(f"v_dot2c_f32_bf16 v{SSQ+t}, v{x+r}, v{x+r}")
    a("v_lshlrev_b32 v15, 4, v1")
    for t in range(1,4):
        a(f"s_add_u32 s37, s30, {t}")
        a("s_and_b32 s37, s37, 3")
        a("s_mul_i32 s37, s37, 18432")
        a(f"s_add_u32 s37, s37, {(t-1)*6144+LDS_ACC}")
        a(f"v_add_u32 v{11+t}, s37, v15")
    for t in range(1,4):
        for e in range(NE):
            d=acc(e,t)
            a(f"ds_write_b128 v{11+t}, a[{d}:{d+3}] offset:{e*1024}")
    if ln:
        a("s_mul_i32 s37, s30, 6144")
        a(f"s_add_u32 s37, s37, {LDS_CS}")
        a("v_add_u32 v10, s37, v15")
        for e in range(NE):
            d=CS+4*e
            a(f"ds_write_b128 v10, a[{d}:{d+3}] offset:{e*1024}")
        for t in range(4):
            xsum16(a,SSQ+t,16+t)
        for t in range(4):
            xsum32(a,SSQ+t,16+t)
        for t in range(4):
            a(f"v_accvgpr_read_b32 v{16+t}, a{RS+4*t}")
        a("s_lshl_b32 s37, s30, 11")
        a(f"s_add_u32 s37, s37, {LDS_ST}")
        a("v_add_u32 v10, s37, v15")
        a(f"ds_write_b128 v10, v[16:19]")
        a(f"ds_write_b128 v10, v[{SSQ}:{SSQ+3}] offset:1024")
    if kind=='o':
        a(f"s_lshl_b32 s37, s30, 4")
        a("s_add_u32 s37, s37, s34")
        a("v_add_u32 v10, s37, v3")
        a("v_mul_u32_u24 v9, 48, v4")
        a(f"s_mul_i32 s38, s{cb_s}, 192")
        a("v_add_u32 v9, s38, v9")
        a("v_mad_u32_u24 v9, v10, s36, v9")
        for i in range(3):
            a(f"buffer_load_dwordx4 v[{200+4*i}:{203+4*i}], v9, s[16:19], 0 offen offset:{16*i}")
        rtok=a.vtok()
    a("s_waitcnt lgkmcnt(0)")
    a("s_barrier")
    a("s_mul_i32 s37, s30, 18432")
    a("v_add_u32 v10, s37, v15")
    P=16
    for u in range(3):
        for e in range(NE):
            r=P+(u*6+e)*4
            a(f"ds_read_b128 v[{r}:{r+3}], v10 offset:{LDS_ACC+u*6144+e*1024}")
    C0=96
    if ln:
        a(f"v_add_u32 v13, {LDS_CS}, v15")
        for u in range(4):
            for e in range(NE):
                r=C0+(u*6+e)*4
                a(f"ds_read_b128 v[{r}:{r+3}], v13 offset:{u*6144+e*1024}")
        for u in range(4):
            a(f"s_sub_u32 s37, s30, {u}")
            a("s_and_b32 s37, s37, 3")
            a("s_lshl_b32 s37, s37, 2")
            a(f"s_add_u32 s37, s37, {LDS_ST+u*2048}")
            a(f"v_add_u32 v{12}, s37, v15")
            a(f"ds_read_b32 v{192+u}, v12")
            a(f"ds_read_b32 v{196+u}, v12 offset:1024")
    Y=224
    for e in range(NE):
        for r in range(4):
            a(f"v_accvgpr_read_b32 v{Y+4*e+r}, a{acc(e,0)+r}")
    a("s_waitcnt lgkmcnt(0)")
    for u in range(3):
        for e in range(NE):
            for r in range(4):
                a(f"v_add_f32 v{Y+4*e+r}, v{Y+4*e+r}, v{P+(u*6+e)*4+r}")
    if ln:
        for u in range(1,4):
            for e in range(NE):
                for r in range(4):
                    a(f"v_add_f32 v{C0+4*e+r}, v{C0+4*e+r}, v{C0+(u*6+e)*4+r}")
        a("v_add_f32 v192, v192, v193"); a("v_add_f32 v194, v194, v195"); a("v_add_f32 v192, v192, v194")
        a("v_add_f32 v196, v196, v197"); a("v_add_f32 v198, v198, v199"); a("v_add_f32 v196, v196, v198")
        a(f"s_mov_b32 s37, {f2u(1.0/D)}")
        a("v_mul_f32 v192, s37, v192")
        a("v_mul_f32 v196, s37, v196")
        a("v_fma_f32 v196, -v192, v192, v196")
        a("v_max_f32 v196, 0, v196")
        a(f"v_add_f32 v196, {f2u(EPS)}, v196")
        a("v_rsq_f32 v196, v196")
        if kind=='q':
            a(f"s_mov_b32 s37, {f2u(QSCALE)}")
            a("v_mul_f32 v196, s37, v196")
        for e in range(NE):
            for r in range(4):
                y=Y+4*e+r
                a(f"v_fma_f32 v{y}, -v192, v{C0+4*e+r}, v{y}")
        for e in range(NE):
            for r in range(4):
                y=Y+4*e+r
                a(f"v_mul_f32 v{y}, v196, v{y}")
    if kind in 'qo':
        if kind=='o':
            a.wait_vm(rtok)
            for r in range(4):
                for e in range(0,6,2):
                    d=200+3*r+e//2
                    a(f"v_lshlrev_b32 v16, 16, v{d}")
                    a(f"v_and_b32 v17, 0xffff0000, v{d}")
                    a(f"v_add_f32 v{Y+4*e+r}, v{Y+4*e+r}, v16")
                    a(f"v_add_f32 v{Y+4*(e+1)+r}, v{Y+4*(e+1)+r}, v17")
        else:
            a(f"s_lshl_b32 s37, s30, 4")
            a("s_add_u32 s37, s37, s34")
            a("v_add_u32 v10, s37, v3")
            a("v_mul_u32_u24 v9, 48, v4")
            a(f"s_mul_i32 s38, s{cb_s}, 192")
            a("v_add_u32 v9, s38, v9")
            a("v_mad_u32_u24 v9, v10, s36, v9")
        O=32
        for r in range(4):
            for e in range(0,6,2):
                a(f"v_cvt_pk_bf16_f32 v{O+3*r+e//2}, v{Y+4*e+r}, v{Y+4*(e+1)+r}")
        for i in range(3):
            a(f"buffer_store_dwordx4 v[{O+4*i}:{O+4*i+3}], v9, s[20:23], 0 offen offset:{16*i}")
    else:
        O=32
        for r in range(4):
            a(f"v_cvt_pk_bf16_f32 v{O+r}, v{Y+r}, v{Y+4+r}")
            a(f"v_cvt_pk_bf16_f32 v{O+4+r}, v{Y+8+r}, v{Y+12+r}")
        a(f"s_lshl_b32 s37, s30, 4")
        a("s_add_u32 s37, s37, s34")
        a("v_add_u32 v10, s37, v3")
        a("v_lshrrev_b32 v16, 5, v10")
        a("v_lshlrev_b32 v16, 10, v16")
        a("v_and_b32 v17, 31, v10")
        a("v_lshl_add_u32 v17, v4, 5, v17")
        a("v_lshl_add_u32 v16, v17, 4, v16")
        a("v_mov_b32 v18, 0x7fffffff")
        a("v_cmp_gt_u32 vcc, 2, v4")
        a("v_cndmask_b32 v16, v18, v16, vcc")
        a(f"buffer_store_dwordx4 v[{O}:{O+3}], v16, s[20:23], 0 offen offset:{KF_OFF}")
        a("v_lshlrev_b32 v17, 2, v10")
        a(f"v_add_u32 v17, {KF2_OFF}, v17")
        a("v_cmp_eq_u32 vcc, 2, v4")
        a("v_cndmask_b32 v17, v18, v17, vcc")
        a(f"buffer_store_dword v{O}, v17, s[20:23], 0 offen")
        a("v_lshrrev_b32 v19, 4, v10")
        a("v_mul_u32_u24 v19, 608, v19")
        a("v_bfe_u32 v20, v10, 2, 1")
        a("v_mul_u32_u24 v20, 304, v20")
        a("v_add_u32 v19, v19, v20")
        a("v_bfe_u32 v20, v10, 3, 1")
        a("v_lshlrev_b32 v20, 2, v20")
        a("v_and_b32 v21, 3, v10")
        a("v_add_u32 v20, v20, v21")
        a("v_lshl_add_u32 v19, v20, 1, v19")
        a("v_lshl_add_u32 v19, v4, 7, v19")
        a(f"v_add_u32 v19, {VF_OFF}, v19")
        a("v_cmp_gt_u32 vcc, 2, v4")
        a("v_cndmask_b32 v20, v18, v19, vcc")
        a("v_cmp_gt_u32 vcc, 3, v4")
        a("v_cndmask_b32 v21, v18, v19, vcc")
        for r in range(4):
            ad = 21 if r==0 else 20
            a(f"buffer_store_short v{O+4+r}, v{ad}, s[20:23], 0 offen offset:{(2*r)*16}")
            a(f"buffer_store_short_d16_hi v{O+4+r}, v{ad}, s[20:23], 0 offen offset:{(2*r+1)*16}")
        a("v_subrev_u32 v22, 96, v19")
        a("v_cmp_eq_u32 vcc, 3, v4")
        a("v_cndmask_b32 v22, v18, v22, vcc")
        a("v_mov_b32 v23, 0x3f80")
        a(f"buffer_store_short v23, v22, s[20:23], 0 offen")
        a("v_mul_f32 v24, v224, v224")
        a("v_fma_f32 v24, v228, v228, v24")
        a("v_mov_b32 v25, 0")
        a("v_max_f32 v26, |v232|, |v236|")
        a("v_mov_b32 v27, 0")
        for r in range(1,4):
            a(f"v_fma_f32 v25, v{Y+r}, v{Y+r}, v25")
            a(f"v_fma_f32 v25, v{Y+4+r}, v{Y+4+r}, v25")
            a(f"v_max3_f32 v27, |v{Y+8+r}|, |v{Y+12+r}|, v27")
        a("v_cmp_gt_u32 vcc, 2, v4")
        a("v_cndmask_b32 v25, 0, v25, vcc")
        a("v_cndmask_b32 v27, 0, v27, vcc")
        a("v_add_f32 v24, v24, v25")
        a("v_max_f32 v26, v26, v27")
        a("v_cmp_gt_u32 vcc, 3, v4")
        a("v_cndmask_b32 v24, 0, v24, vcc")
        a("v_cndmask_b32 v26, 0, v26, vcc")
        xsum16(a,24,28); xsum32(a,24,28)
        xmax16(a,26,28); xmax32(a,26,28)
        for sh in (8,4,2,1):
            a(f"v_mov_b32_dpp v28, v24 row_ror:{sh} row_mask:0xf bank_mask:0xf")
            a(f"v_max_f32 v24, v24, v28")
            a(f"v_mov_b32_dpp v29, v26 row_ror:{sh} row_mask:0xf bank_mask:0xf")
            a(f"v_max_f32 v26, v26, v29")
        a(f"s_lshl_b32 s37, s{rb_s}, 2")
        a("s_add_u32 s37, s37, s30")
        a("s_lshl_b32 s37, s37, 2")
        a("v_mov_b32 v28, s37")
        a("v_cmp_eq_u32 vcc, 0, v1")
        a("v_cndmask_b32 v28, v18, v28, vcc")
        a("buffer_store_dword v24, v28, s[24:27], 0 offen")
        a("buffer_store_dword v26, v28, s[24:27], 0 offen offset:512")
```

```python
import sys
from common import *
from k_splitk import *

NAME="sequential_preLN__grouped_kv_mqa__glu_gated_bilinear__prompt"
HEADER=open("cdna_kernels/"+NAME+".s.ref").read().split("; Override launch")[0]

def k1():
    a=Asm()
    a("s_cmp_ge_u32 s2, 224")
    a("s_cbranch_scc1 K1_END")
    a("s_cmp_ge_u32 s2, 192")
    a("s_cbranch_scc1 K1_KV")
    a("s_mul_hi_u32 s60, s2, 0x2aaaaaab")
    a("s_mul_i32 s61, s60, 6")
    a("s_sub_u32 s61, s2, s61")
    gen_splitk(a,'q',60,61)
    a("s_endpgm")
    a.label("K1_KV")
    a("s_sub_u32 s60, s2, 192")
    gen_splitk(a,'kv',60,61)
    a.label("K1_END")
    a("s_endpgm")
    return a

def k3():
    a=Asm()
    a("s_cmp_ge_u32 s2, 192")
    a("s_cbranch_scc1 K3_END")
    a("s_mul_hi_u32 s60, s2, 0x2aaaaaab")
    a("s_mul_i32 s61, s60, 6")
    a("s_sub_u32 s61, s2, s61")
    gen_splitk(a,'o',60,61)
    a.label("K3_END")
    a("s_endpgm")
    return a

def build(kernels):
    s=HEADER
    for (n,a,g,b,l,v,ac) in kernels:
        s+=f"; @launch kernel={n} grid=({g},1,1) block=({b},1,1) lds={l}\n"
    s+='.amdgcn_target "amdgcn-amd-amdhsa--gfx950"\n'
    done=set()
    for (n,a,g,b,l,v,ac) in kernels:
        if n in done: continue
        done.add(n)
        s+=kernel_text(n,a,v,ac)
    return s

if __name__=="__main__":
    ks=[]
    ks.append(("k1_kernel",k1(),224,256,SPLITK_LDS,512,256))
    try:
        from k_attn import *
        ks.append(("k2_kernel",k2(),K2_GRID,K2_BLOCK,K2_LDS,K2_VGPR,K2_ACC))
    except ImportError as e: print("no k2",e)
    ks.append(("k3_kernel",k3(),192,256,SPLITK_LDS,512,256))
    try:
        from k_ffn import *
        ks.insert(1,("kp_kernel",kpack(),PACK_GRID,256,0,128,128))
        ks.append(("k4_kernel",k4(),256,256,K4_LDS,512,256))
        ks.append(("k5_kernel",k5(),K5_GRID,256,0,256,256))
    except ImportError as e: print("no k4",e)
    out=sys.argv[1] if len(sys.argv)>1 else "cdna_kernels/"+NAME+".s"
    open(out,"w").write(build(ks))
    print("written",out)
```

```python
import re

TRANS = ("v_exp_f32","v_log_f32","v_rcp_f32","v_rsq_f32","v_sqrt_f32","v_sin_f32","v_cos_f32","v_exp_f16","v_rcp_iflag_f32")

def regs_of(tok):
    tok = tok.strip()
    m = re.fullmatch(r"-?\|?([vas])(\d+)\|?", tok)
    if m: return {(m.group(1), int(m.group(2)))}
    m = re.fullmatch(r"-?([vas])\[(\d+):(\d+)\]", tok)
    if m: return {(m.group(1), i) for i in range(int(m.group(2)), int(m.group(3))+1)}
    if tok == "vcc": return {("s","vcc")}
    if tok == "exec": return {("s","exec")}
    if tok == "m0": return {("s","m0")}
    return set()

class Ins:
    __slots__=("text","op","kind","w","r","passes","srcC","nopn","islabel","target","store_data","srcAB")
    def __init__(self, text):
        self.text=text
        self.islabel=False; self.target=None; self.nopn=0; self.passes=0
        self.w=set(); self.r=set(); self.srcC=set(); self.srcAB=set(); self.store_data=set()
        t=text.strip()
        if t.endswith(":"):
            self.islabel=True; self.op=t[:-1]; self.kind="label"; return
        parts=t.split(None,1)
        op=parts[0]; self.op=op
        rest=parts[1] if len(parts)>1 else ""
        ops=[x.strip() for x in rest.split(",")] if rest else []
        clean=[]
        for o in ops:
            clean.append(o.split()[0] if o.split() else o)
        R=lambda i: regs_of(clean[i]) if i<len(clean) else set()
        if op.startswith("v_mfma"):
            self.kind="mfma"
            self.passes = 8 if "32x32" in op else 4
            self.w=R(0); self.srcAB=R(1)|R(2); self.srcC=R(3); self.r=self.srcAB|self.srcC
        elif op.startswith("v_"):
            self.kind="trans" if op in TRANS else "valu"
            if op.startswith("v_cmp"):
                self.w=R(0); self.r=R(1)|R(2)
            elif op.startswith("v_permlane") and "swap" in op:
                self.w=R(0)|R(1); self.r=R(0)|R(1); self.kind="permlane"
            elif op in ("v_readfirstlane_b32","v_readlane_b32"):
                self.w=R(0); self.r=R(1)|R(2); self.kind="readlane"
            elif op.startswith(("v_add_co","v_sub_co","v_addc_co","v_subb_co")):
                self.w=R(0)|R(1); self.r=set().union(*[R(i) for i in range(2,len(clean))])
            else:
                self.w=R(0); self.r=set().union(*[R(i) for i in range(1,len(clean))]) if len(clean)>1 else set()
                if op.startswith(("v_fmac","v_dot2c","v_mac")) : self.r|=R(0)
                if op.startswith("v_cndmask") and len(clean)==3: self.r|={("s","vcc")}
                if "dpp" in t or "row_" in t or "quad_perm" in t: self.kind="dpp"; self.r|=R(0)
                if op=="v_accvgpr_write_b32" or op=="v_accvgpr_read_b32" or op=="v_accvgpr_mov_b32": pass
        elif op.startswith(("buffer_","global_")):
            self.kind="vmem"
            lds = " lds" in (" "+t)
            if "load" in op and not lds:
                self.w=R(0); self.r=set().union(*[R(i) for i in range(1,len(clean))])
            elif "load" in op and lds:
                self.r=set().union(*[R(i) for i in range(0,len(clean))])|{("s","m0")}
                self.kind="vmem_lds"
            elif "store" in op:
                if op.startswith("buffer_"):
                    self.store_data=R(0)
                else:
                    self.store_data=R(1)
                self.r=set().union(*[R(i) for i in range(0,len(clean))])
                if not ("x3" in op or "x4" in op): self.store_data=set()
            elif "atomic" in op:
                self.r=set().union(*[R(i) for i in range(0,len(clean))])
                if " sc0" in t: self.w=R(0)
            else:
                pass
        elif op.startswith("ds_"):
            self.kind="ds"
            if "read" in op or "swizzle" in op or "bpermute" in op or "permute" in op:
                self.w=R(0); self.r=set().union(*[R(i) for i in range(1,len(clean))])
            else:
                self.r=set().union(*[R(i) for i in range(0,len(clean))])
        elif op=="s_nop":
            self.kind="nop"; self.nopn=int(clean[0],0)
        elif op.startswith(("s_cbranch","s_branch")):
            self.kind="branch"; self.target=clean[0]
        elif op.startswith(("s_load","s_memtime","s_memrealtime","s_buffer_load")):
            self.kind="smem"; self.w=R(0); self.r=R(1)
        elif op.startswith("s_"):
            self.kind="salu"
            if op.startswith(("s_cmp","s_waitcnt","s_barrier","s_endpgm","s_setprio","s_sleep")):
                self.r=set().union(*[R(i) for i in range(0,len(clean))]) if clean else set()
            else:
                self.w=R(0); self.r=set().union(*[R(i) for i in range(1,len(clean))]) if len(clean)>1 else set()
                if "saveexec" in op: self.w|={("s","exec")}
        else:
            raise ValueError("unknown op "+t)
    def slots(self):
        if self.kind=="label": return 0
        if self.kind=="nop": return self.nopn+1
        return 1

def isvalu(i): return i.kind in ("valu","trans","permlane","readlane","dpp")
def vg(s): return {x for x in s if x[0] in "va"}
def sg(s): return {x for x in s if x[0]=="s"}

def need(p, c):
    n=0
    if isvalu(p):
        pw=vg(p.w); ps=sg(p.w)
        if c.kind=="mfma" and pw & c.r: n=max(n,2)
        if p.kind=="trans" and isvalu(c) and c.kind!="trans" and pw & c.r: n=max(n,1)
        if p.kind=="trans" and c.kind=="trans" and pw & c.r: n=max(n,1)
        if c.kind=="readlane" and pw & c.r: n=max(n,1)
        if c.kind in("permlane","dpp") and pw & (c.r|c.w): n=max(n,2)
        if ps:
            if isvalu(c) and ps & c.r: n=max(n,2 if c.kind!="readlane" else 4)
            if c.kind in("vmem","vmem_lds") and ps & c.r: n=max(n,5)
            if c.kind in("salu","branch","smem") and ps & c.r: n=max(n,2)
            if c.kind=="branch" and ("s","vcc") in ps and "vcc" in c.op: n=max(n,5)
    if p.op.startswith("v_dot2"):
        if c.op==p.op:
            ab=c.r-c.w
            if p.w & ab: n=max(n,3)
        elif (p.w & (c.r|c.w)): n=max(n,3)
    if p.kind=="mfma":
        hi = p.passes==8
        if c.kind=="mfma":
            if p.w & c.srcC:
                if p.w==c.srcC and p.op==c.op: pass
                else: n=max(n,10 if hi else 6)
            if p.w & c.srcAB: n=max(n,12 if hi else 8)
            if p.w & c.w and not (p.w==c.srcC and p.op==c.op) and not (p.w & c.srcC): n=max(n,10 if hi else 6)
        elif isvalu(c):
            if p.w & (c.r|c.w): n=max(n,12 if hi else 8)
            if p.srcC & vg(c.w): n=max(n,7 if hi else 3)
        elif c.kind in("vmem","vmem_lds","ds"):
            if p.w & (c.r|c.w): n=max(n,12 if hi else 8)
    if p.kind=="vmem" and p.store_data and isvalu(c) and p.store_data & vg(c.w): n=max(n,2)
    if p.kind=="vmem" and p.store_data and c.kind in("vmem","ds","mfma") and p.store_data & vg(c.w): n=max(n,1)
    if p.kind=="salu" and ("s","m0") in p.w and c.kind=="vmem_lds": n=max(n,1)
    return n

class Asm:
    def __init__(self):
        self.ins=[]
        self.vm=0
        self.lg=0
        self.uid=0
    def __call__(self, text):
        for l in text.split("\n"):
            l=l.split(";")[0].split("//")[0].strip()
            if not l: continue
            i=Ins(l)
            self.ins.append(i)
            if i.kind in("vmem","vmem_lds") and not i.op.startswith(("buffer_inv","buffer_wbl2")): self.vm+=1
            if i.kind=="ds": self.lg+=1
        return self
    def label(self,name): self.ins.append(Ins(name+":"))
    def newlabel(self,p="L"):
        self.uid+=1; return f"{p}_{self.uid}"
    def vtok(self): return self.vm
    def ltok(self): return self.lg
    def wait_vm(self,tok):
        n=self.vm-tok
        self(f"s_waitcnt vmcnt({min(n,63)})")
    def wait_lg(self,tok):
        n=self.lg-tok
        self(f"s_waitcnt lgkmcnt({min(n,15)})")
    def finalize(self):
        out=[]
        def req(prev, c):
            k=0; dist=0
            for p in reversed(prev):
                if p.kind=="label": continue
                n=need(p,c)
                if n>dist: k=max(k,n-dist)
                dist+=p.slots()
                if dist>=20: break
            return k
        for c in self.ins:
            if c.kind!="label":
                k=req(out,c)
                while k>0:
                    m=min(k,16)
                    out.append(Ins(f"s_nop {m-1}")); k-=m
            out.append(c)
        labpos={c.op:i for i,c in enumerate(out) if c.islabel}
        for i,c in enumerate(out):
            if c.kind=="branch" and c.target in labpos:
                prev=out[max(0,i-24):i+1]
                j=labpos[c.target]+1
                seq=list(prev); cnt=0
                while j<len(out) and cnt<20:
                    d=out[j]
                    if d.kind!="label":
                        k=req(seq,d)
                        if k>0:
                            raise RuntimeError(f"hazard across branch {c.text} -> {d.text}: need {k} more states")
                        cnt+=d.slots()
                        if d.kind=="branch" and d.op=="s_branch": break
                    seq.append(d); j+=1
        self.ins=out
    def text(self):
        s=""
        for i in self.ins:
            s+=(i.text+"\n") if i.islabel else ("    "+i.text+"\n")
        return s

def kernel_text(name, asm, vgpr=512, accum=256, sgpr=102):
    asm.finalize()
    return f""".text
.globl {name}
.p2align 8
.type {name},@function
{name}:
{asm.text()}.section .rodata,"a"
.p2align 6
.amdhsa_kernel {name}
  .amdhsa_next_free_vgpr {vgpr}
  .amdhsa_next_free_sgpr {sgpr}
  .amdhsa_accum_offset {accum}
  .amdhsa_group_segment_fixed_size 0
  .amdhsa_kernarg_size 96
  .amdhsa_user_sgpr_count 2
  .amdhsa_user_sgpr_kernarg_segment_ptr 1
  .amdhsa_system_sgpr_workgroup_id_x 1
.end_amdhsa_kernel
"""
```

```python
from mcommon import *
QA0,QA2,QB0,QB2=16,20,24,28
OA,OB=32,48
SA,SB=64,80
PA,PB=96,104
K0=[112,116]; K2=[120,122]
VV=[[124,128],[132,136]]
BA,BB=144,160
BOUND2=3600.0
VK,VK2,VVA=14,15,140

def mf16(d,a_,b_,c): return f"v_mfma_f32_32x32x16_bf16 v[{d}:{d+15}], v[{a_}:{a_+3}], v[{b_}:{b_+3}], {c}"
def mf8(d,a_,b_): return f"v_mfma_f32_32x32x8_bf16 v[{d}:{d+15}], v[{a_}:{a_+1}], v[{b_}:{b_+1}], v[{d}:{d+15}]"
def R16(d): return f"v[{d}:{d+15}]"

ORDER=os.environ.get("ATT_ORDER","b")
def valu_stream(Sx,Px):
    e=lambda i: f"v_exp_f32 v{Sx+i}, v{Sx+i}"
    c=lambda j: f"v_cvt_pk_bf16_f32 v{Px+j}, v{Sx+2*j}, v{Sx+2*j+1}"
    if ORDER=="a":
        seq=[e(0),e(1),e(2),c(0),e(3),e(4), c(1),e(5),e(6),c(2),e(7),e(8), c(3),e(9),e(10),c(4),e(11),e(12), c(5),e(13),e(14),e(15),c(6),c(7)]
    else:
        seq=[e(0),e(1),e(2),e(3),e(4),e(5), e(6),c(0),e(7),c(1),e(8),e(9), e(10),c(2),e(11),c(3),e(12),e(13), e(14),e(15),c(4),c(5),c(6),c(7)]
    return [seq[0:6],seq[6:12],seq[12:18],seq[18:24]]

def phase(a, Sx,Px, Sy,Qy0,Qy2,By, kbuf, Oy,Py,vbuf, extra=None):
    g=valu_stream(Sx,Px)
    m=[mf16(Sy,K0[kbuf],Qy0,R16(By)), mf16(Oy,VV[vbuf][0],Py,R16(Oy)), mf8(Sy,K2[kbuf],Qy2), mf16(Oy,VV[vbuf][1],Py+4,R16(Oy))]
    for i in range(4):
        a(m[i])
        if extra and i<len(extra):
            for x in extra[i]: a(x)
        for x in g[i]: a(x)

def attn_issue(a, st):
    a("v_and_b32 v1, 63, v0")
    a("v_and_b32 v3, 31, v0")
    a("v_bfe_u32 v4, v0, 5, 1")
    a(f"s_lshl_b32 s32, s{S_J}, 2")
    a(f"s_add_u32 s32, s32, s{S_W}")
    mk_srd(a,8,P_WS,KV_BYTES,WS_KV)
    mk_srd(a,12,P_WS,MAT,WS_Q)
    mk_srd(a,16,P_WS,MAT,WS_O)
    mk_srd(a,20,P_WS,1024,WS_NORM)
    a("v_lshlrev_b32 v8, 4, v1")
    a(f"s_lshl_b32 s40, s{S_W}, 10")
    def dma(g):
        for i in range(10):
            a("s_mov_b32 m0, s40")
            a("s_nop 0")
            a("buffer_load_dwordx4 v8, s[8:11], s40 offen"+SC+" lds")
            a(f"s_add_u32 s40, s40, {4096 if i<9 else 1024}")
        st['dma'][g]=a.vtok()
    st['dma']={}
    a(f"s_lshl_b32 s35, s{S_RB}, 6")
    a("v_add_u32 v5, s35, v3")
    a(f"s_movk_i32 s36, {ROWB}")
    a("s_mul_i32 s37, s32, 36")
    a("v_lshlrev_b32 v6, 4, v4")
    a("v_add_u32 v6, s37, v6")
    a("v_mad_u32_u24 v6, v5, s36, v6")
    a("v_mov_b32 v9, 0x7fffffff")
    a("v_cmp_eq_u32 vcc, 0, v4")
    a("v_cndmask_b32 v7, v9, v6, vcc")
    a(f"buffer_load_dwordx4 v[{QA0}:{QA0+3}], v6, s[12:15], 0 offen"+SC)
    a(f"buffer_load_dword v{QA2}, v7, s[12:15], 0 offen offset:32"+SC)
    a(f"s_mov_b32 s38, {32*ROWB}")
    a(f"buffer_load_dwordx4 v[{QB0}:{QB0+3}], v6, s[12:15], s38 offen"+SC)
    a(f"buffer_load_dword v{QB2}, v7, s[12:15], s38 offen offset:32"+SC)
    a("v_lshlrev_b32 v2, 3, v1")
    a("buffer_load_dwordx2 v[10:11], v2, s[20:23], 0 offen"+SC)
    a("buffer_load_dwordx2 v[12:13], v2, s[20:23], 0 offen offset:512"+SC)
    st['q']=a.vtok()
    for g in range(4): dma(g)

def attn_main(a, st, mid=None):
    a(f"v_mov_b32 v{QA2+1}, 0"); a(f"v_mov_b32 v{QB2+1}, 0")
    a(f"v_mov_b32 v{K2[0]+1}, 0"); a(f"v_mov_b32 v{K2[1]+1}, 0")
    for i in range(16):
        a(f"v_mov_b32 v{OA+i}, 0"); a(f"v_mov_b32 v{OB+i}, 0")
        a(f"v_mov_b32 v{BA+i}, 0"); a(f"v_mov_b32 v{BB+i}, 0")
    for i in range(8): a(f"v_mov_b32 v{PB+i}, 0")
    for i in range(4):
        a(f"v_mov_b32 v{VV[1][0]+i}, 0"); a(f"v_mov_b32 v{VV[1][1]+i}, 0")
    a(f"v_mov_b32 v{VK}, v8")
    a(f"v_lshlrev_b32 v{VK2}, 2, v3")
    a(f"v_add_u32 v{VK2}, {KV_K2}, v{VK2}")
    a(f"v_mov_b32 v{VVA}, v3")
    a("v_cmp_le_u32 vcc, 19, v3")
    a(f"v_cndmask_b32 v{VVA}, v{VVA}, 4, vcc")
    a("v_subrev_u32 v141, 20, v3")
    a("v_cmp_gt_u32 vcc, 8, v141")
    a(f"v_cndmask_b32 v{VVA}, v{VVA}, 0, vcc")
    a(f"v_lshlrev_b32 v{VVA}, 4, v{VVA}")
    a("v_mul_u32_u24 v141, 304, v4")
    a(f"v_add_u32 v{VVA}, v{VVA}, v141")
    a(f"v_add_u32 v{VVA}, {KV_V}, v{VVA}")
    a.wait_vm(st['q'])
    a("v_max_f32 v10, v10, v11")
    a("v_max_f32 v12, v12, v13")
    for sh in (8,4,2,1):
        a(f"v_mov_b32_dpp v11, v10 row_ror:{sh} row_mask:0xf bank_mask:0xf")
        a(f"v_mov_b32_dpp v13, v12 row_ror:{sh} row_mask:0xf bank_mask:0xf")
        a("v_max_f32 v10, v10, v11")
        a("v_max_f32 v12, v12, v13")
    xmax16(a,10,11); xmax16(a,12,13); xmax32(a,10,11); xmax32(a,12,13)
    a("v_mov_b32 v142, 0"); a("v_mov_b32 v143, 0")
    for r in range(4):
        a(f"v_dot2c_f32_bf16 v142, v{QA0+r}, v{QA0+r}")
        a(f"v_dot2c_f32_bf16 v143, v{QB0+r}, v{QB0+r}")
    a(f"v_dot2c_f32_bf16 v142, v{QA2}, v{QA2}")
    a(f"v_dot2c_f32_bf16 v143, v{QB2}, v{QB2}")
    xsum32(a,142,11); xsum32(a,143,13)
    a("v_max_f32 v142, v142, v143")
    a("v_mul_f32 v142, v142, v10")
    a(f"s_mov_b32 s42, {f2u(BOUND2/1.03)}")
    a("v_cmp_nle_f32 vcc, v142, s42")
    a(f"s_mov_b32 s43, {f2u(1e12)}")
    a("v_cmp_nle_f32 s[46:47], v12, s43")
    a("s_or_b64 s[46:47], vcc, s[46:47]")
    if os.environ.get("ATT_FORCE_FB"): a("s_mov_b64 s[46:47], -1")
    LDS_FB=152*1024
    a("s_cmp_lg_u64 s[46:47], 0")
    a("s_cselect_b32 s45, 1, 0")
    a("v_mov_b32 v10, s45")
    a(f"s_lshl_b32 s45, s{S_W}, 2")
    a(f"s_add_u32 s45, s45, {LDS_FB}")
    a("v_mov_b32 v11, s45")
    a("ds_write_b32 v11, v10")
    if mid: mid()
    cnt=[a.vm-st['dma'][g] for g in range(4)]
    a(f"s_waitcnt vmcnt({min(63,cnt[0])}) lgkmcnt(0)")
    a("s_barrier")
    a(f"v_mov_b32 v11, {LDS_FB}")
    a("ds_read_b128 v[10:13], v11")
    a("s_waitcnt lgkmcnt(0)")
    a("v_or_b32 v10, v10, v11"); a("v_or_b32 v12, v12, v13"); a("v_or_b32 v10, v10, v12")
    a("v_readfirstlane_b32 s45, v10")
    a("s_cmp_eq_u32 s45, 0")
    a("s_cbranch_scc1 ATT_GO")
    a("s_waitcnt vmcnt(0)")
    a("s_barrier")
    a(f"v_mov_b32 v142, v{VK}")
    a(f"v_mov_b32 v143, v{VK2}")
    a(f"v_mov_b32 v176, 0xff800000"); a(f"v_mov_b32 v177, 0xff800000")
    a("s_mov_b32 s44, 0")
    a.label("ATT_FB")
    a(f"ds_read_b128 v[{K0[0]}:{K0[0]+3}], v142")
    a(f"ds_read_b32 v{K2[0]}, v143")
    a("s_waitcnt lgkmcnt(0)")
    a(mf16(SA,K0[0],QA0,"0")); a(mf16(SB,K0[0],QB0,"0"))
    a("s_nop 9")
    a(mf8(SA,K2[0],QA2)); a(mf8(SB,K2[0],QB2))
    a("v_add_u32 v142, 1024, v142"); a("v_add_u32 v143, 128, v143")
    a("s_add_u32 s44, s44, 1")
    a("s_and_b32 s45, s44, 15")
    a("s_cmp_lg_u32 s45, 0")
    a("s_cselect_b32 s48, 0, 1")
    a(f"s_mul_i32 s49, s48, {KV_STAGE-16*1024}")
    a(f"s_mul_i32 s48, s48, {KV_STAGE-16*128}")
    a("v_add_u32 v142, s49, v142"); a("v_add_u32 v143, s48, v143")
    a("s_nop 7")
    for i in range(0,16,2):
        a(f"v_max3_f32 v176, v{SA+i}, v{SA+i+1}, v176")
    for i in range(0,16,2):
        a(f"v_max3_f32 v177, v{SB+i}, v{SB+i+1}, v177")
    a("s_cmp_lt_u32 s44, 64")
    a("s_cbranch_scc1 ATT_FB")
    xmax32(a,176,178); xmax32(a,177,178)
    for i in range(16):
        a(f"v_sub_f32 v{BA+i}, 0, v176"); a(f"v_sub_f32 v{BB+i}, 0, v177")
    a.label("ATT_GO")
    a(f"ds_read_b128 v[{K0[0]}:{K0[0]+3}], v{VK}")
    a(f"ds_read_b32 v{K2[0]}, v{VK2}")
    a("s_waitcnt lgkmcnt(0)")
    a(mf16(SA,K0[0],QA0,R16(BA)))
    a("s_nop 9")
    a(mf8(SA,K2[0],QA2))
    a("s_nop 7")
    a(f"s_mov_b32 s44, 0")
    UNR=16
    a.label("ATT_LOOP")
    for u in range(UNR):
        b=u&1
        if u==UNR-1:
            L1=a.newlabel("AW"); L2=a.newlabel("AW"); L3=a.newlabel("AW")
            a("s_cmp_eq_u32 s44, 0"); a(f"s_cbranch_scc1 {L1}")
            a("s_cmp_eq_u32 s44, 1"); a(f"s_cbranch_scc1 {L2}")
            a(f"s_waitcnt vmcnt({min(63,cnt[3])})"); a(f"s_branch {L3}")
            a.label(L1); a(f"s_waitcnt vmcnt({min(63,cnt[1])})"); a(f"s_branch {L3}")
            a.label(L2); a(f"s_waitcnt vmcnt({min(63,cnt[2])})")
            a.label(L3); a("s_barrier")
            kn,k2n=KV_STAGE,KV_STAGE
        else:
            kn,k2n=(u+1)*1024,(u+1)*128
        ex=[[f"ds_read_b128 v[{K0[b^1]}:{K0[b^1]+3}], v{VK} offset:{kn}"],
            [f"ds_read_b128 v[{VV[b][0]}:{VV[b][0]+3}], v{VVA} offset:{u*1216}"],
            [f"ds_read_b32 v{K2[b^1]}, v{VK2} offset:{k2n}"],
            [f"ds_read_b128 v[{VV[b][1]}:{VV[b][1]+3}], v{VVA} offset:{u*1216+608}"]]
        phase(a, SA,PA, SB,QB0,QB2,BB, b, OB,PB,b^1, ex)
        a("s_waitcnt lgkmcnt(0)")
        ex=None
        if u==UNR-1:
            ex=[[f"v_add_u32 v{VK}, {KV_STAGE}, v{VK}"],[f"v_add_u32 v{VK2}, {KV_STAGE}, v{VK2}"],[f"v_add_u32 v{VVA}, {KV_STAGE}, v{VVA}"],["s_add_u32 s44, s44, 1","s_cmp_lt_u32 s44, 4"]]
        phase(a, SB,PB, SA,QA0,QA2,BA, b^1, OA,PA,b, ex)
    a("s_cbranch_scc1 ATT_LOOP")
    b=(UNR-1)&1
    a("s_nop 1")
    a(mf16(OB,VV[b][0],PB,R16(OB))); a(mf16(OB,VV[b][1],PB+4,R16(OB)))

def attn_epilogue(a):
    a(f"s_mul_i32 s40, s{S_RB}, 73728")
    a("s_lshr_b32 s41, s32, 1"); a("s_lshl_b32 s41, s41, 10"); a("s_add_u32 s41, s41, s40")
    a("s_and_b32 s42, s32, 1"); a("s_lshl_b32 s42, s42, 9"); a("s_add_u32 s41, s41, s42")
    a("v_lshrrev_b32 v8, 4, v3"); a("v_mul_u32_u24 v8, 18432, v8")
    a("v_and_b32 v9, 15, v3"); a("v_lshl_add_u32 v8, v9, 4, v8")
    a("v_lshl_add_u32 v6, v4, 8, v8"); a("v_add_u32 v6, s41, v6")
    a(f"s_lshr_b32 s41, s{S_J}, 2"); a("s_add_u32 s41, s41, 16"); a("s_lshl_b32 s41, s41, 10"); a("s_add_u32 s41, s41, s40")
    a(f"s_and_b32 s42, s{S_J}, 3"); a("s_lshl_b32 s42, s42, 8"); a("s_add_u32 s41, s41, s42")
    a(f"s_lshl_b32 s42, s{S_W}, 2"); a("s_add_u32 s41, s41, s42")
    a("v_add_u32 v7, s41, v8")
    a("v_mov_b32 v9, 0x7fffffff")
    a("v_cmp_eq_u32 vcc, 0, v4")
    a("v_cndmask_b32 v7, v9, v7, vcc")
    a("s_mov_b32 s38, 36864")
    for (O,T,so) in ((OA,96,"0"),(OB,104,"s38")):
        a(f"v_mov_b32 v10, v{O+10}"); a(f"v_mov_b32 v11, v{O+10}")
        a("v_permlane32_swap_b32 v10, v11")
        a("v_rcp_f32 v10, v10")
        for i in range(10): a(f"v_mul_f32 v{O+i}, v10, v{O+i}")
        for j in range(5): a(f"v_cvt_pk_bf16_f32 v{T+j}, v{O+2*j}, v{O+2*j+1}")
        a(f"v_permlane32_swap_b32 v{T}, v{T+2}")
        a(f"v_permlane32_swap_b32 v{T+1}, v{T+3}")
        a(f"buffer_store_dwordx4 v[{T}:{T+3}], v6, s[16:19], {so} offen"+SC)
        a(f"buffer_store_dword v{T+4}, v7, s[16:19], {so} offen"+SC)
```

```python
from mcommon import *
T_BASE=73728
RING=54

def pack_srds(a):
    mk_srd(a,24,P_WS,32*WSTREAM,WS_W)

def pack_wgu_load(a, blk_s, ks_s, tb, raw):
    a(f"v_and_b32 v{tb}, 63, v0")
    a(f"v_and_b32 v{tb+1}, 15, v{tb}")
    a(f"v_bfe_u32 v{tb+2}, v{tb}, 4, 1")
    a(f"v_lshrrev_b32 v{tb+3}, 5, v{tb}")
    a(f"s_mul_i32 s50, s{ks_s}, {16*F*2}")
    a(f"s_lshl_b32 s51, s{blk_s}, 8")
    a("s_add_u32 s50, s50, s51")
    a(f"v_mul_u32_u24 v{tb+3}, {8*F*2}, v{tb+3}")
    a(f"v_lshl_add_u32 v{tb+3}, v{tb+1}, 4, v{tb+3}")
    a(f"v_add_u32 v{tb+3}, s50, v{tb+3}")
    a(f"v_mov_b32 v{tb+4}, s{P_WG}"); a(f"v_mov_b32 v{tb+5}, s{P_WG+1}")
    a(f"v_mov_b32 v{tb+6}, s{P_WU}"); a(f"v_mov_b32 v{tb+7}, s{P_WU+1}")
    a(f"v_cmp_eq_u32 vcc, 1, v{tb+2}")
    a(f"v_cndmask_b32 v{tb+4}, v{tb+4}, v{tb+6}, vcc")
    a(f"v_cndmask_b32 v{tb+5}, v{tb+5}, v{tb+7}, vcc")
    a(f"v_add_co_u32 v{tb+4}, vcc, v{tb+4}, v{tb+3}")
    a(f"v_addc_co_u32 v{tb+5}, vcc, 0, v{tb+5}, vcc")
    for i in range(8):
        a(f"global_load_dwordx4 v[{raw+4*i}:{raw+4*i+3}], v[{tb+4}:{tb+5}], off")
        if i<7:
            a(f"v_add_co_u32 v{tb+4}, vcc, {F*2}, v{tb+4}")
            a(f"v_addc_co_u32 v{tb+5}, vcc, 0, v{tb+5}, vcc")
    return a.vtok()

def pack_perm(a, n, raw, ob):
    a("s_mov_b32 s52, 0x05040100"); a("s_mov_b32 s53, 0x07060302")
    for e in range(n):
        for r in range(4):
            sel="s52" if (e&1)==0 else "s53"
            a(f"v_perm_b32 v{ob+4*e+r}, v{raw+4*(2*r+1)+(e>>1)}, v{raw+4*(2*r)+(e>>1)}, {sel}")

def pack_wgu_store(a, blk_s, ks_s, tb, ob):
    a(f"v_and_b32 v{tb}, 63, v0")
    a(f"v_lshlrev_b32 v{tb}, 4, v{tb}")
    for e in range(8):
        a(f"s_lshl_b32 s54, s{blk_s}, 3")
        a(f"s_add_u32 s54, s54, {e}")
        a("s_mul_hi_u32 s55, s54, 0x1c71c71d")
        a("s_mul_i32 s56, s55, 9")
        a("s_sub_u32 s56, s54, s56")
        a("s_mul_hi_u32 s57, s56, 0x55555556")
        a("s_mul_i32 s58, s57, 3")
        a("s_sub_u32 s58, s56, s58")
        a("s_mul_i32 s57, s57, 36")
        a(f"s_add_u32 s57, s57, s{ks_s}")
        a("s_mul_i32 s57, s57, 3")
        a("s_add_u32 s57, s57, s58")
        a("s_lshl_b32 s57, s57, 10")
        a(f"s_mul_i32 s55, s55, {WSTREAM}")
        a("s_add_u32 s57, s57, s55")
        a(f"buffer_store_dwordx4 v[{ob+4*e}:{ob+4*e+3}], v{tb}, s[24:27], s57 offen"+SC)

def pack_wd_load(a, s_s, sg_s, nb_s, tb, raw):
    mk_srd(a,20,P_WD,F*D*2)
    a(f"v_and_b32 v{tb}, 63, v0")
    a(f"v_and_b32 v{tb+1}, 15, v{tb}")
    a(f"v_lshrrev_b32 v{tb+2}, 4, v{tb}")
    a(f"s_lshr_b32 s50, s{sg_s}, 2")
    a("s_mul_i32 s50, s50, 9")
    a(f"s_and_b32 s51, s{sg_s}, 3")
    a("s_lshl_b32 s51, s51, 1")
    a("s_add_u32 s50, s50, s51")
    a("s_add_u32 s51, s50, 1")
    a(f"s_sub_u32 s54, s{sg_s}, 16")
    a("s_mul_i32 s54, s54, 18")
    a("s_add_u32 s54, s54, 8")
    a("s_add_u32 s55, s54, 9")
    a(f"s_cmp_lt_u32 s{sg_s}, 16")
    a("s_cselect_b32 s50, s50, s54")
    a("s_cselect_b32 s51, s51, s55")
    a(f"s_mul_i32 s54, s{s_s}, 36")
    a("s_add_u32 s50, s50, s54")
    a("s_add_u32 s51, s51, s54")
    for r in (50,51):
        a(f"s_lshr_b32 s54, s{r}, 3")
        a("s_lshl_b32 s54, s54, 7")
        a(f"s_and_b32 s{r}, s{r}, 7")
        a(f"s_add_u32 s{r}, s{r}, s54")
    a(f"v_mov_b32 v{tb+3}, s50"); a(f"v_mov_b32 v{tb+4}, s51")
    a(f"v_cmp_le_u32 vcc, 2, v{tb+2}")
    a(f"v_cndmask_b32 v{tb+3}, v{tb+3}, v{tb+4}, vcc")
    a(f"v_and_b32 v{tb+4}, 1, v{tb+2}")
    a(f"v_lshl_add_u32 v{tb+3}, v{tb+4}, 5, v{tb+3}")
    a(f"v_mul_u32_u24 v{tb+3}, {ROWB}, v{tb+3}")
    a(f"v_mul_u32_u24 v{tb+4}, 12, v{tb+1}")
    a(f"v_add_u32 v{tb+3}, v{tb+3}, v{tb+4}")
    a(f"s_mul_i32 s54, s{nb_s}, 192")
    for e in range(8):
        a(f"s_add_u32 s55, s54, {(64*(e>>2)+8*(e&3))*ROWB}")
        a(f"buffer_load_dwordx3 v[{raw+4*e}:{raw+4*e+2}], v{tb+3}, s[20:23], s55 offen")
    return a.vtok()

def pack_wd_store(a, s_s, sg_s, nb_s, tb, ob):
    a(f"v_and_b32 v{tb}, 63, v0")
    a(f"v_lshlrev_b32 v{tb}, 4, v{tb}")
    for e in range(6):
        a(f"s_mul_i32 s54, s{nb_s}, 6")
        a(f"s_add_u32 s54, s54, {e}")
        a("s_mul_hi_u32 s55, s54, 0x1c71c71d")
        a("s_mul_i32 s56, s55, 9")
        a("s_sub_u32 s56, s54, s56")
        a("s_mul_hi_u32 s57, s56, 0x55555556")
        a("s_mul_i32 s58, s57, 3")
        a("s_sub_u32 s58, s56, s58")
        a("s_mul_i32 s57, s57, 18")
        a(f"s_add_u32 s57, s57, s{sg_s}")
        a("s_mul_i32 s57, s57, 3")
        a("s_add_u32 s57, s57, s58")
        a("s_add_u32 s57, s57, 324")
        a("s_lshl_b32 s57, s57, 10")
        a(f"s_lshl_b32 s56, s{s_s}, 2")
        a("s_add_u32 s55, s55, s56")
        a(f"s_mul_i32 s55, s55, {WSTREAM}")
        a("s_add_u32 s57, s57, s55")
        a(f"buffer_store_dwordx4 v[{ob+4*e}:{ob+4*e+3}], v{tb}, s[24:27], s57 offen"+SC)

def pack_task(a, task_s, tb=180, raw=192, ob=224):
    LW=a.newlabel("PKW"); LE=a.newlabel("PKE")
    pack_srds(a)
    a(f"s_cmp_ge_u32 s{task_s}, 1296")
    a(f"s_cbranch_scc1 {LW}")
    a(f"s_mul_hi_u32 s41, s{task_s}, 0x71c71c8")
    a("s_mul_i32 s42, s41, 36")
    a(f"s_sub_u32 s42, s{task_s}, s42")
    pack_wgu_load(a,41,42,tb,raw)
    a("s_waitcnt vmcnt(0)")
    pack_perm(a,8,raw,ob)
    pack_wgu_store(a,41,42,tb,ob)
    a(f"s_branch {LE}")
    a.label(LW)
    a(f"s_sub_u32 s40, s{task_s}, 1296")
    a("s_mul_hi_u32 s41, s40, 0x2aaaaaab")
    a("s_mul_i32 s42, s41, 6")
    a("s_sub_u32 s42, s40, s42")
    a("s_mul_hi_u32 s43, s41, 0xe38e38f")
    a("s_mul_i32 s44, s43, 18")
    a("s_sub_u32 s44, s41, s44")
    pack_wd_load(a,43,44,42,tb,raw)
    a("s_waitcnt vmcnt(0)")
    pack_perm(a,6,raw,ob)
    pack_wd_store(a,43,44,42,tb,ob)
    a.label(LE)

XF=[[16,20],[24,28]]
TF=[[16,20,24,28],[32,36,40,44]]
def ACC(set_,t,mt): return 64+set_*96+(t*2+mt)*16
def ACCB(set_,t,j): return 64+set_*48+(t*4+j)*4

class FFN:
    def __init__(self,a): self.a=a; self.n=0; self.wtok={}
    def ring_setup(self):
        a=self.a
        mk_srd(a,8,P_WS,32*WSTREAM,WS_W)
        a(f"s_lshl_b32 s37, s{S_J}, 2"); a(f"s_add_u32 s37, s37, s{S_W}")
        a(f"s_mul_i32 s37, s37, {WSTREAM}")
        a("v_and_b32 v2, 63, v0")
        a("v_lshlrev_b32 v2, 4, v2")
        a("v_add_u32 v7, s37, v2")
        a("s_mov_b32 s40, 0")
    def issue_w(self):
        a=self.a; n=self.n
        if n>=486: return
        slot=n%RING
        a(f"buffer_load_dwordx4 a[{4*slot}:{4*slot+3}], v7, s[8:11], s40 offen offset:{(n%4)*1024}"+SC)
        self.wtok[n]=a.vtok()
        if n%4==3: a("s_add_u32 s40, s40, 4096")
        self.n=n+1
    def ln(self):
        a=self.a
        mk_srd(a,12,P_WS,MAT,WS_H)
        mk_srd(a,16,P_WS,8*MAT,WS_PART)
        a("v_and_b32 v1, 63, v0")
        a("v_and_b32 v3, 15, v1"); a("v_lshrrev_b32 v4, 4, v1")
        a(f"s_lshl_b32 s34, s{S_W}, 4")
        a(f"s_mul_i32 s33, s{S_RB}, 73728"); a(f"s_mul_i32 s35, s{S_W}, 3072"); a("s_add_u32 s33, s33, s35")
        a("v_add_u32 v5, s33, v2")
        HB=64
        for nb in range(6):
            if nb: a(f"s_movk_i32 s35, {nb*12288}") if nb*12288<32768 else a(f"s_mov_b32 s35, {nb*12288}")
            for i in range(3):
                q=HB+4*(nb*3+i)
                a(f"buffer_load_dwordx4 v[{q}:{q+3}], v5, s[12:15], {'s35' if nb else '0'} offen offset:{1024*i}"+SC)
        htok=a.vtok()
        a("v_mov_b32 v8, 0"); a("v_mov_b32 v9, 0"); a("v_mov_b32 v10, 0x3f803f80")
        a.wait_vm(htok)
        for i in range(72):
            a(f"v_dot2c_f32_bf16 v8, v{HB+i}, v10")
            a(f"v_dot2c_f32_bf16 v9, v{HB+i}, v{HB+i}")
        xsum16(a,8,11); xsum16(a,9,12); xsum32(a,8,11); xsum32(a,9,12)
        a(f"s_mov_b32 s38, {f2u(1.0/D)}")
        a("v_mul_f32 v8, s38, v8"); a("v_mul_f32 v9, s38, v9")
        a("v_fma_f32 v9, -v8, v8, v9")
        a("v_max_f32 v9, 0, v9")
        a(f"v_add_f32 v9, {f2u(EPS)}, v9")
        a("v_rsq_f32 v9, v9")
        a("v_mul_f32 v8, v8, v9")
        a("v_sub_f32 v8, 0, v8")
        a("v_add_u32 v11, s34, v3")
        a("v_lshrrev_b32 v12, 5, v11")
        a("v_mul_u32_u24 v12, 36864, v12")
        a("v_and_b32 v11, 31, v11")
        a("v_lshl_add_u32 v12, v11, 4, v12")
        a("v_mul_u32_u24 v11, 3, v4")
        for i in range(3):
            a(f"v_add_u32 v13, {i}, v11")
            a("v_lshrrev_b32 v14, 1, v13"); a(f"v_lshl_add_u32 v{16+i}, v14, 10, v12")
            a("v_and_b32 v14, 1, v13"); a(f"v_lshl_add_u32 v{16+i}, v14, 9, v{16+i}")
        for nb in range(6):
            for i in range(3):
                q=HB+4*(nb*3+i)
                for r in range(4):
                    d=q+r
                    a(f"v_lshlrev_b32 v13, 16, v{d}")
                    a(f"v_and_b32 v14, 0xffff0000, v{d}")
                    a(f"v_fma_f32 v13, v13, v9, v8")
                    a(f"v_fma_f32 v14, v14, v9, v8")
                    a(f"v_cvt_pk_bf16_f32 v{d}, v13, v14")
                a(f"ds_write_b128 v{16+i}, v[{q}:{q+3}] offset:{nb*6144}")
        a("v_and_b32 v11, 31, v1")
        a("v_lshrrev_b32 v13, 4, v11")
        a("v_lshlrev_b32 v13, 10, v13")
        a("v_lshrrev_b32 v14, 5, v1")
        a("v_lshl_add_u32 v13, v14, 8, v13")
        a("v_and_b32 v11, 15, v11")
        a("v_lshl_add_u32 v13, v11, 4, v13")
        a(f"s_lshl_b32 s38, s{S_W}, 14"); a(f"s_add_u32 s38, s38, {T_BASE}")
        a("v_add_u32 v8, s38, v13")
        a(f"s_lshr_b32 s38, s{S_W}, 1"); a("s_add_u32 s38, s38, 16"); a("s_lshl_b32 s38, s38, 12")
        a(f"s_and_b32 s39, s{S_W}, 1"); a("s_lshl_b32 s39, s39, 9"); a("s_add_u32 s38, s38, s39"); a(f"s_add_u32 s38, s38, {T_BASE}")
        a("v_add_u32 v9, s38, v13")
        a("v_add_u32 v10, 36864, v2")
        a("s_waitcnt lgkmcnt(0)")
        a("s_barrier")
    def main(self):
        a=self.a; issue_w=self.issue_w; wtok=self.wtok
        def xread(buf,ks):
            a(f"ds_read_b128 v[{XF[buf][0]}:{XF[buf][0]+3}], v2 offset:{ks*1024}")
            a(f"ds_read_b128 v[{XF[buf][1]}:{XF[buf][1]+3}], v10 offset:{ks*1024}")
            return a.ltok()
        def epiA(p):
            g=[]
            for t in range(3):
                for mt in range(2):
                    A=ACC(p&1,t,mt); c=3*p+t
                    g.append([f"v_mul_f32 v{A+i}, v{A+i}, v{A+8+i}" for i in range(4)])
                    g.append([f"v_mul_f32 v{A+i}, v{A+i}, v{A+8+i}" for i in range(4,8)])
                    g.append([f"v_cvt_pk_bf16_f32 v{A+8+j}, v{A+2*j}, v{A+2*j+1}" for j in range(4)])
                    if c<8: w=f"ds_write_b128 v8, v[{A+8}:{A+11}] offset:{mt*2048+(c>>1)*4096+(c&1)*512}"
                    else:   w=f"ds_write_b128 v9, v[{A+8}:{A+11}] offset:{mt*2048}"
                    g.append([w])
            return g
        step=0
        xt=xread(0,0)
        pend=[]
        for p in range(3):
            for ks in range(36):
                buf=step&1
                n0=(p*36+ks)*3
                a.wait_lg(xt)
                last=(p==2 and ks==35)
                if not last: xt_next=xread(buf^1,(ks+1)%36)
                a.wait_vm(wtok[n0+2])
                k=0
                for t in range(3):
                    slot=(n0+t)%RING
                    for mt in range(2):
                        A=ACC(p&1,t,mt); x=XF[buf][mt]
                        c="0" if ks==0 else f"v[{A}:{A+15}]"
                        a(f"v_mfma_f32_32x32x16_bf16 v[{A}:{A+15}], a[{4*slot}:{4*slot+3}], v[{x}:{x+3}], {c}")
                        k+=1
                        if pend and ks>=1 and k in (1,3,5):
                            for ins in pend.pop(0): a(ins)
                    issue_w()
                if not last: xt=xt_next
                step+=1
            pend=epiA(p)
            stamp(a,7+p) if p==2 else None
        for grp in pend:
            for ins in grp: a(ins)
        pend=[]
        a(f"v_add_u32 v11, {T_BASE}, v2")
        a(f"v_add_u32 v12, {T_BASE+36864}, v2")
        a(f"s_mul_i32 s41, s{S_J}, {MAT}"); a(f"s_mul_i32 s42, s{S_RB}, 73728"); a("s_add_u32 s41, s41, s42")
        a(f"s_mul_i32 s42, s{S_W}, 18432"); a("s_add_u32 s41, s41, s42")
        a("v_add_u32 v13, s41, v2")
        a("s_waitcnt lgkmcnt(0)")
        a("s_barrier")
        def tread(buf,sg):
            base,off=(11,sg*4096) if sg<9 else (12,(sg-9)*4096)
            for j in range(4):
                a(f"ds_read_b128 v[{TF[buf][j]}:{TF[buf][j]+3}], v{base} offset:{off+j*1024}")
            return a.ltok()
        def epiB(p):
            g=[]
            for t in range(3):
                for jp in range(2):
                    A0=ACCB(p&1,t,2*jp); A1=ACCB(p&1,t,2*jp+1)
                    g.append([f"v_cvt_pk_bf16_f32 v{A0}, v{A0}, v{A0+1}", f"v_cvt_pk_bf16_f32 v{A0+1}, v{A0+2}, v{A0+3}",
                              f"v_cvt_pk_bf16_f32 v{A0+2}, v{A1}, v{A1+1}", f"v_cvt_pk_bf16_f32 v{A0+3}, v{A1+2}, v{A1+3}"])
                    idx=(p*3+t)*2+jp
                    g.append([f"s_movk_i32 s43, {idx*1024}", f"buffer_store_dwordx4 v[{A0}:{A0+3}], v13, s[16:19], s43 offen"+SC])
            return g
        step=0
        tt=tread(0,0)
        for p in range(3):
            for sg in range(18):
                buf=step&1
                n0=324+(p*18+sg)*3
                a.wait_lg(tt)
                last=(p==2 and sg==17)
                if not last: tt_next=tread(buf^1,(sg+1)%18)
                a.wait_vm(wtok[n0+2])
                k=0
                for t in range(3):
                    slot=(n0+t)%RING
                    for j in range(4):
                        A=ACCB(p&1,t,j); x=TF[buf][j]
                        c="0" if sg==0 else f"v[{A}:{A+3}]"
                        a(f"v_mfma_f32_16x16x32_bf16 v[{A}:{A+3}], a[{4*slot}:{4*slot+3}], v[{x}:{x+3}], {c}")
                        k+=1
                        if pend and sg>=1 and k in (3,7):
                            for ins in pend.pop(0): a(ins)
                    issue_w()
                if not last: tt=tt_next
                step+=1
            pend=epiB(p)
        for grp in pend:
            for ins in grp: a(ins)

def reduce_phase(a):
    a("v_and_b32 v1, 63, v0")
    mk_srd(a,8,P_WS,8*MAT,WS_PART)
    mk_srd(a,12,P_WS,MAT,WS_H)
    mk_srd(a,16,P_OUT,MAT)
    a(f"s_mul_i32 s35, s{S_RB}, 73728"); a(f"s_mul_i32 s36, s{S_J}, 12288"); a("s_add_u32 s35, s35, s36")
    a(f"s_lshr_b32 s36, s{S_W}, 1"); a("s_lshl_b32 s36, s36, 10"); a("s_add_u32 s35, s35, s36")
    a(f"s_and_b32 s36, s{S_W}, 1"); a("s_lshl_b32 s36, s36, 3"); a("s_add_u32 s35, s35, s36")
    a("v_lshlrev_b32 v2, 4, v1"); a("v_add_u32 v2, s35, v2")
    a("v_and_b32 v3, 15, v1"); a("v_lshrrev_b32 v4, 4, v1")
    a(f"s_lshl_b32 s36, s{S_RB}, 6"); a(f"s_lshl_b32 s37, s{S_W}, 4"); a("s_add_u32 s36, s36, s37")
    a("v_add_u32 v3, s36, v3")
    a(f"s_movk_i32 s38, {ROWB}")
    a("v_mul_u32_u24 v4, 48, v4")
    a(f"s_mul_i32 s37, s{S_J}, 192"); a("v_add_u32 v4, s37, v4")
    a("v_mad_u32_u24 v3, v3, s38, v4")
    HB=8
    a(f"s_mul_i32 s39, s{S_RB}, 73728"); a(f"s_mul_i32 s40, s{S_J}, 12288"); a("s_add_u32 s39, s39, s40")
    a(f"s_mul_i32 s40, s{S_W}, 3072"); a("s_add_u32 s39, s39, s40")
    a("v_lshlrev_b32 v7, 4, v1"); a("v_add_u32 v7, s39, v7")
    for i in range(3):
        a(f"buffer_load_dwordx4 v[{HB+4*i}:{HB+4*i+3}], v7, s[12:15], 0 offen offset:{1024*i}"+SC)
    htok=a.vtok()
    PB=32
    toks={}
    for s in range(8):
        for e in range(6):
            q=PB+(s*6+e)*2
            a(f"s_mov_b32 s40, {s*MAT+e*2048}")
            a(f"buffer_load_dwordx2 v[{q}:{q+1}], v2, s[8:11], s40 offen"+SC)
        toks[s]=a.vtok()
    AC=128
    a("v_mov_b32 v5, 0x00003f80")
    a("v_mov_b32 v6, 0x3f800000")
    a.wait_vm(htok)
    for r in range(4):
        for e in range(0,6,2):
            d=HB+3*r+e//2
            a(f"v_lshlrev_b32 v{AC+4*e+r}, 16, v{d}")
            a(f"v_and_b32 v{AC+4*(e+1)+r}, 0xffff0000, v{d}")
    for s in range(8):
        a.wait_vm(toks[s])
        for e in range(6):
            q=PB+(s*6+e)*2
            a(f"v_dot2c_f32_bf16 v{AC+4*e}, v{q}, v5")
            a(f"v_dot2c_f32_bf16 v{AC+4*e+1}, v{q}, v6")
            a(f"v_dot2c_f32_bf16 v{AC+4*e+2}, v{q+1}, v5")
            a(f"v_dot2c_f32_bf16 v{AC+4*e+3}, v{q+1}, v6")
    O=8
    for r in range(4):
        for e in range(0,6,2):
            a(f"v_cvt_pk_bf16_f32 v{O+3*r+e//2}, v{AC+4*e+r}, v{AC+4*(e+1)+r}")
    for i in range(3):
        a(f"buffer_store_dwordx4 v[{O+4*i}:{O+4*i+3}], v3, s[16:19], 0 offen offset:{16*i}")
```

```python
from mcommon import *
XB=16; WR=96; WF=224; SSQ=248; ONES=252
LDS_ACC=0; LDS_CS=73728; LDS_ST=98304; LDS_KVI=106496

def splitk_issue(a, kind, st):
    a("v_and_b32 v1, 63, v0")
    a("v_and_b32 v3, 15, v0")
    a("v_bfe_u32 v4, v0, 4, 2")
    a(f"s_mul_i32 s31, s{S_W}, 5")
    a(f"s_cmp_eq_u32 s{S_W}, 3")
    a("s_cselect_b32 s32, 1, 0")
    a("s_sub_u32 s31, s31, s32")
    a(f"s_cmp_ge_u32 s{S_W}, 2")
    a("s_cselect_b32 s33, 0x40000000, 0")
    if kind=='o':
        mk_srd(a,8,P_WS,MAT,WS_O)
        mk_srd(a,12,P_WO,D*D*2)
    elif kind=='q':
        mk_srd(a,8,P_X,MAT)
        mk_srd(a,12,P_WQ,D*D*2)
    else:
        mk_srd(a,8,P_X,MAT)
        mk_srd(a,12,P_WK,D*DH*2)
        mk_srd(a,16,P_WV,D*DH*2)
    a(f"s_lshl_b32 s34, s{S_RB}, 6")
    a(f"s_movk_i32 s36, {ROWB}")
    if kind=='o':
        a("v_lshlrev_b32 v9, 4, v1")
        a(f"s_mul_i32 s35, s{S_RB}, 73728")
        a("s_lshl_b32 s37, s31, 10")
        a("s_add_u32 s35, s35, s37")
        a("v_add_u32 v9, s35, v9")
        for t in range(4):
            a(f"s_add_u32 s37, s{S_W}, {t}")
            a("s_and_b32 s37, s37, 3")
            a("s_mul_i32 s37, s37, 18432")
            a(f"v_add_u32 v{5+t}, s37, v9")
    else:
        a("v_lshrrev_b32 v5, 3, v1")
        a("v_and_b32 v6, 7, v1")
        a("v_lshrrev_b32 v7, 1, v5")
        a("v_xor_b32 v8, v6, v7")
        a("v_xor_b32 v9, 4, v8")
        a(f"s_lshl_b32 s37, s{S_W}, 4"); a("s_add_u32 s37, s37, s34")
        a("v_add_u32 v5, s37, v5")
        a("v_lshlrev_b32 v8, 4, v8"); a("v_lshlrev_b32 v9, 4, v9")
        a("v_mad_u32_u24 v8, v5, s36, v8")
        a("v_add_u32 v5, 8, v5")
        a("v_mad_u32_u24 v9, v5, s36, v9")
        a(f"s_mul_i32 s45, s{S_W}, 18432")
        for g in range(2):
            for i in range(9):
                a("s_mov_b32 m0, s45")
                a(f"s_movk_i32 s46, {128*i}")
                a(f"buffer_load_dwordx4 v{8+g}, s[8:11], s46 offen lds")
                a("s_add_u32 s45, s45, 1024")
        st['xdma']=a.vtok()
    if kind=='kv':
        a("v_mul_u32_u24 v11, 288, v4")
        a("v_lshl_add_u32 v11, v3, 2, v11")
        a("s_mul_i32 s37, s31, 1152")
        a("v_add_u32 v11, s37, v11")
    elif kind=='q':
        a(f"v_mul_u32_u24 v11, {8*ROWB}, v4")
        a("v_mul_u32_u24 v10, 12, v3")
        a("v_add_u32 v11, v11, v10")
        a(f"s_mul_i32 s37, s31, {32*ROWB}")
        a(f"s_mul_i32 s38, s{S_J}, 192")
        a("s_add_u32 s37, s37, s38")
        a("v_add_u32 v11, s37, v11")
    else:
        a("v_lshrrev_b32 v10, 1, v4"); a("v_mul_u32_u24 v10, 18, v10")
        a("v_and_b32 v11, 1, v4"); a("v_lshl_add_u32 v10, v11, 3, v10")
        a(f"v_mul_u32_u24 v11, {ROWB}, v10")
        a("v_mul_u32_u24 v10, 12, v3")
        a(f"s_mul_i32 s38, s{S_J}, 192")
        a("v_add_u32 v10, s38, v10")
        a("v_add_u32 v11, v11, v10")
        a(f"s_mul_i32 s37, s31, {36*ROWB}")
        a("v_add_u32 v11, s37, v11")
        a(f"v_mul_u32_u24 v12, {72*ROWB}, v4")
        a("v_add_u32 v12, v12, v10")
        a(f"s_cmp_eq_u32 s{S_W}, 3")
        a("s_cselect_b64 s[42:43], -1, 0")
        a("v_cndmask_b32 v12, v11, v12, s[42:43]")
    st['x']={}; st['w']={}
    def load_x(j):
        if kind!='o': return
        for t in range(4):
            r=XB+16*j+4*t
            if j==4: a("s_add_u32 s39, s33, 4096"); so="s39"; off=0
            else: so="0"; off=1024*j
            a(f"buffer_load_dwordx4 v[{r}:{r+3}], v{5+t}, s[8:11], {so} offen offset:{off}"+SC)
        st['x'][j]=a.vtok()
    def load_w(j):
        slot=j%4
        if kind=='kv':
            a(f"s_mov_b32 s39, {j*1152}")
            if j==4: a("s_add_u32 s39, s39, s33")
            for i in range(8):
                r=WR+32*slot+4*i
                a(f"buffer_load_dword v{r}, v11, s[12:15], s39 offen offset:{36*i}")
                a(f"buffer_load_dword v{r+1}, v11, s[16:19], s39 offen offset:{36*i}")
        elif kind=='o' and j in (2,3):
            a(f"s_cmp_eq_u32 s{S_W}, 3")
            for i in range(8):
                r=WR+32*slot+4*i
                a(f"s_mov_b32 s39, {(36*j+i)*ROWB}")
                a(f"s_cmov_b32 s39, {(288*(j-2)+18*(i>>1)+16+(i&1))*ROWB}")
                a(f"buffer_load_dwordx3 v[{r}:{r+2}], v12, s[12:15], s39 offen")
        else:
            KR=36 if kind=='o' else 32
            for g in range(2):
                a(f"s_mov_b32 s39, {(KR*j+4*g)*ROWB}")
                if j==4: a("s_add_u32 s39, s39, s33")
                for i in range(4):
                    r=WR+32*slot+4*(4*g+i)
                    a(f"buffer_load_dwordx3 v[{r}:{r+2}], v11, s[12:15], s39 offen offset:{ROWB*i}")
        st['w'][j]=a.vtok()
    st['load_x']=load_x; st['load_w']=load_w

def splitk_compute(a, kind, st, after_mfma=None):
    NE = 4 if kind=='kv' else 6
    ln = kind!='o'
    det='3' if kind=='o' else '1'
    dstamp(a,det,2)
    a("s_mov_b32 s50, 0x05040100")
    a("s_mov_b32 s51, 0x07060302")
    if ln:
        for i in range(4): a(f"v_mov_b32 v{ONES+i}, 0x3f803f80")
        for i in range(4): a(f"v_mov_b32 v{SSQ+i}, 0")
    def acc(e,t): return (e*4+t)*4
    CS=96; RS=120
    if kind!='o':
        a("v_lshrrev_b32 v5, 3, v3"); a("v_mul_u32_u24 v5, 9216, v5")
        a("v_and_b32 v6, 7, v3"); a("v_lshl_add_u32 v5, v6, 7, v5")
        a("v_lshrrev_b32 v6, 1, v3"); a("v_xor_b32 v6, v6, v4"); a("v_lshl_add_u32 v5, v6, 4, v5")
        for t in range(4):
            a(f"s_add_u32 s37, s{S_W}, {t}"); a("s_and_b32 s37, s37, 3"); a(f"s_mul_i32 s{52+t}, s37, 18432")
        a.wait_vm(st['xdma'])
        dstamp(a,det,3)
        a("s_barrier")
        for j in range(5):
            a(f"s_add_u32 s37, s31, {j}")
            a("s_and_b32 s38, s37, 1"); a("s_lshl_b32 s38, s38, 6")
            a("s_lshr_b32 s37, s37, 1"); a("s_lshl_b32 s37, s37, 10")
            if j==4:
                a("s_lshr_b32 s39, s33, 12"); a("s_add_u32 s37, s37, s39")
            a("v_xor_b32 v6, s38, v5")
            a("v_add_u32 v6, s37, v6")
            for t in range(4):
                r=XB+16*j+4*t
                a(f"v_add_u32 v7, s{52+t}, v6")
                a(f"ds_read_b128 v[{r}:{r+3}], v7")
        a("s_waitcnt lgkmcnt(0)")
        a("s_barrier")
    dstamp(a,det,4)
    for j in range(5):
        slot=j%4
        a.wait_vm(st['w'][j])
        if j==0: dstamp(a,det,5)
        for e in range(NE):
            for r in range(4):
                src=(e>>1); sel="s50" if (e&1)==0 else "s51"
                s0=WR+32*slot+4*(2*r+1)+src; s1=WR+32*slot+4*(2*r)+src
                a(f"v_perm_b32 v{WF+4*e+r}, v{s0}, v{s1}, {sel}")
        if j==0: st['load_w'](4)
        if kind=='o': a.wait_vm(st['x'][j])
        for e in range(NE):
            for t in range(4):
                d=acc(e,t); x=XB+16*j+4*t
                c = "0" if j==0 else f"a[{d}:{d+3}]"
                a(f"v_mfma_f32_16x16x32_bf16 a[{d}:{d+3}], v[{WF+4*e}:{WF+4*e+3}], v[{x}:{x+3}], {c}")
            if ln:
                d=CS+4*e; c="0" if j==0 else f"a[{d}:{d+3}]"
                a(f"v_mfma_f32_16x16x32_bf16 a[{d}:{d+3}], v[{WF+4*e}:{WF+4*e+3}], v[{ONES}:{ONES+3}], {c}")
        if ln:
            for t in range(4):
                d=RS+4*t; x=XB+16*j+4*t; c="0" if j==0 else f"a[{d}:{d+3}]"
                a(f"v_mfma_f32_16x16x32_bf16 a[{d}:{d+3}], v[{ONES}:{ONES+3}], v[{x}:{x+3}], {c}")
                for r in range(4):
                    a(f"v_dot2c_f32_bf16 v{SSQ+t}, v{x+r}, v{x+r}")
    dstamp(a,det,6)
    a("v_lshlrev_b32 v15, 4, v1")
    for t in range(1,4):
        a(f"s_add_u32 s37, s{S_W}, {t}")
        a("s_and_b32 s37, s37, 3")
        a("s_mul_i32 s37, s37, 18432")
        a(f"s_add_u32 s37, s37, {(t-1)*6144+LDS_ACC}")
        a(f"v_add_u32 v{11+t}, s37, v15")
    for t in range(1,4):
        for e in range(NE):
            d=acc(e,t)
            a(f"ds_write_b128 v{11+t}, a[{d}:{d+3}] offset:{e*1024}")
    if ln:
        a(f"s_mul_i32 s37, s{S_W}, 6144")
        a(f"s_add_u32 s37, s37, {LDS_CS}")
        a("v_add_u32 v10, s37, v15")
        for e in range(NE):
            d=CS+4*e
            a(f"ds_write_b128 v10, a[{d}:{d+3}] offset:{e*1024}")
        for t in range(4): xsum16(a,SSQ+t,16+t)
        for t in range(4): xsum32(a,SSQ+t,16+t)
        for t in range(4): a(f"v_accvgpr_read_b32 v{16+t}, a{RS+4*t}")
        a(f"s_lshl_b32 s37, s{S_W}, 11")
        a(f"s_add_u32 s37, s37, {LDS_ST}")
        a("v_add_u32 v10, s37, v15")
        a(f"ds_write_b128 v10, v[16:19]")
        a(f"ds_write_b128 v10, v[{SSQ}:{SSQ+3}] offset:1024")
    Y=224
    for e in range(NE):
        for r in range(4):
            a(f"v_accvgpr_read_b32 v{Y+4*e+r}, a{acc(e,0)+r}")
    a(f"s_lshl_b32 s37, s{S_W}, 4")
    a("s_add_u32 s37, s37, s34")
    a("v_add_u32 v8, s37, v3")
    if kind!='kv':
        a("v_mul_u32_u24 v9, 48, v4")
        a(f"s_mul_i32 s38, s{S_J}, 192")
        a("v_add_u32 v9, s38, v9")
        a("v_mad_u32_u24 v9, v8, s36, v9")
    if kind=='o':
        mk_srd(a,16,P_X,MAT)
        for i in range(3):
            a(f"buffer_load_dwordx4 v[{200+4*i}:{203+4*i}], v9, s[16:19], 0 offen offset:{16*i}")
        rtok=a.vtok()
    a("s_waitcnt lgkmcnt(0)")
    if after_mfma: after_mfma()
    dstamp(a,det,7)
    a("s_barrier")
    dstamp(a,det,8)
    a(f"s_mul_i32 s37, s{S_W}, 18432")
    a("v_add_u32 v10, s37, v15")
    P=16
    for u in range(3):
        for e in range(NE):
            r=P+(u*6+e)*4
            a(f"ds_read_b128 v[{r}:{r+3}], v10 offset:{LDS_ACC+u*6144+e*1024}")
    C0=96
    if ln:
        a(f"v_add_u32 v13, {LDS_CS}, v15")
        for u in range(4):
            for e in range(NE):
                r=C0+(u*6+e)*4
                a(f"ds_read_b128 v[{r}:{r+3}], v13 offset:{u*6144+e*1024}")
        for u in range(4):
            a(f"s_sub_u32 s37, s{S_W}, {u}")
            a("s_and_b32 s37, s37, 3")
            a("s_lshl_b32 s37, s37, 2")
            a(f"s_add_u32 s37, s37, {LDS_ST+u*2048}")
            a(f"v_add_u32 v12, s37, v15")
            a(f"ds_read_b32 v{192+u}, v12")
            a(f"ds_read_b32 v{196+u}, v12 offset:1024")
    a("s_waitcnt lgkmcnt(0)")
    for u in range(3):
        for e in range(NE):
            for r in range(4):
                a(f"v_add_f32 v{Y+4*e+r}, v{Y+4*e+r}, v{P+(u*6+e)*4+r}")
    if ln:
        for u in range(1,4):
            for e in range(NE):
                for r in range(4):
                    a(f"v_add_f32 v{C0+4*e+r}, v{C0+4*e+r}, v{C0+(u*6+e)*4+r}")
        a("v_add_f32 v192, v192, v193"); a("v_add_f32 v194, v194, v195"); a("v_add_f32 v192, v192, v194")
        a("v_add_f32 v196, v196, v197"); a("v_add_f32 v198, v198, v199"); a("v_add_f32 v196, v196, v198")
        a(f"s_mov_b32 s37, {f2u(1.0/D)}")
        a("v_mul_f32 v192, s37, v192")
        a("v_mul_f32 v196, s37, v196")
        a("v_fma_f32 v196, -v192, v192, v196")
        a("v_max_f32 v196, 0, v196")
        a(f"v_add_f32 v196, {f2u(EPS)}, v196")
        a("v_rsq_f32 v196, v196")
        if kind=='q':
            a(f"s_mov_b32 s37, {f2u(QSCALE)}")
            a("v_mul_f32 v196, s37, v196")
        for e in range(NE):
            for r in range(4):
                y=Y+4*e+r
                a(f"v_fma_f32 v{y}, -v192, v{C0+4*e+r}, v{y}")
        for e in range(NE):
            for r in range(4):
                y=Y+4*e+r
                a(f"v_mul_f32 v{y}, v196, v{y}")
    dstamp(a,det,10)
    O=32
    if kind in 'qo':
        if kind=='o':
            mk_srd(a,20,P_WS,MAT,WS_H)
            a.wait_vm(rtok)
            for r in range(4):
                for e in range(0,6,2):
                    d=200+3*r+e//2
                    a(f"v_lshlrev_b32 v16, 16, v{d}")
                    a(f"v_and_b32 v17, 0xffff0000, v{d}")
                    a(f"v_add_f32 v{Y+4*e+r}, v{Y+4*e+r}, v16")
                    a(f"v_add_f32 v{Y+4*(e+1)+r}, v{Y+4*(e+1)+r}, v17")
        else:
            mk_srd(a,20,P_WS,MAT,WS_Q)
        for r in range(4):
            for e in range(0,6,2):
                a(f"v_cvt_pk_bf16_f32 v{O+3*r+e//2}, v{Y+4*e+r}, v{Y+4*(e+1)+r}")
        if kind=='o':
            a(f"s_mul_i32 s37, s{S_RB}, 73728"); a(f"s_mul_i32 s38, s{S_J}, 12288"); a("s_add_u32 s37, s37, s38")
            a(f"s_mul_i32 s38, s{S_W}, 3072"); a("s_add_u32 s37, s37, s38")
            a("v_add_u32 v9, s37, v15")
            for i in range(3):
                a(f"buffer_store_dwordx4 v[{O+4*i}:{O+4*i+3}], v9, s[20:23], 0 offen offset:{1024*i}"+SC)
        else:
            for i in range(3):
                a(f"buffer_store_dwordx4 v[{O+4*i}:{O+4*i+3}], v9, s[20:23], 0 offen offset:{16*i}"+SC)
    else:
        mk_srd(a,20,P_WS,KV_BYTES,WS_KV)
        mk_srd(a,24,P_WS,1024,WS_NORM)
        for r in range(4):
            a(f"v_cvt_pk_bf16_f32 v{O+r}, v{Y+r}, v{Y+4+r}")
            a(f"v_cvt_pk_bf16_f32 v{O+4+r}, v{Y+8+r}, v{Y+12+r}")
        a(f"s_lshl_b32 s37, s{S_W}, 4")
        a("v_add_u32 v10, s37, v3")
        a("v_mov_b32 v18, 0x3ffff")
        a("v_lshrrev_b32 v16, 5, v10")
        a("v_lshlrev_b32 v16, 10, v16")
        a("v_and_b32 v17, 31, v10")
        a("v_lshl_add_u32 v17, v4, 5, v17")
        a("v_lshl_add_u32 v16, v17, 4, v16")
        a(f"v_add_u32 v16, {LDS_KVI}, v16")
        a("v_cmp_gt_u32 vcc, 2, v4")
        a("s_and_saveexec_b64 s[40:41], vcc")
        a(f"ds_write_b128 v16, v[{O}:{O+3}]")
        a("s_mov_b64 exec, s[40:41]")
        a("v_lshlrev_b32 v17, 2, v10")
        a(f"v_add_u32 v17, {LDS_KVI+2048}, v17")
        a("v_cmp_eq_u32 vcc, 2, v4")
        a("s_and_saveexec_b64 s[40:41], vcc")
        a(f"ds_write_b32 v17, v{O}")
        a("s_mov_b64 exec, s[40:41]")
        a("v_lshrrev_b32 v19, 4, v10")
        a("v_mul_u32_u24 v19, 608, v19")
        a("v_bfe_u32 v20, v10, 2, 1")
        a("v_mul_u32_u24 v20, 304, v20")
        a("v_add_u32 v19, v19, v20")
        a("v_bfe_u32 v20, v10, 3, 1")
        a("v_lshlrev_b32 v20, 2, v20")
        a("v_and_b32 v21, 3, v10")
        a("v_add_u32 v20, v20, v21")
        a("v_lshl_add_u32 v19, v20, 1, v19")
        a("v_lshl_add_u32 v19, v4, 7, v19")
        a(f"v_add_u32 v19, {LDS_KVI+2560}, v19")
        a("v_cmp_gt_u32 vcc, 3, v4")
        a("s_and_saveexec_b64 s[40:41], vcc")
        a(f"ds_write_b16 v19, v{O+4}")
        a(f"ds_write_b16_d16_hi v19, v{O+4} offset:16")
        a("s_mov_b64 exec, s[40:41]")
        a("v_cmp_gt_u32 vcc, 2, v4")
        a("s_and_saveexec_b64 s[40:41], vcc")
        for r in range(1,4):
            a(f"ds_write_b16 v19, v{O+4+r} offset:{(2*r)*16}")
            a(f"ds_write_b16_d16_hi v19, v{O+4+r} offset:{(2*r+1)*16}")
        a("s_mov_b64 exec, s[40:41]")
        a("v_subrev_u32 v22, 96, v19")
        a("v_mov_b32 v23, 0x3f80")
        a("v_cmp_eq_u32 vcc, 3, v4")
        a("s_and_saveexec_b64 s[40:41], vcc")
        a(f"ds_write_b16 v22, v23")
        a("s_mov_b64 exec, s[40:41]")
        a("v_mul_f32 v24, v224, v224")
        a("v_fma_f32 v24, v228, v228, v24")
        a("v_mov_b32 v25, 0")
        a("v_max_f32 v26, |v232|, |v236|")
        a("v_mov_b32 v27, 0")
        for r in range(1,4):
            a(f"v_fma_f32 v25, v{Y+r}, v{Y+r}, v25")
            a(f"v_fma_f32 v25, v{Y+4+r}, v{Y+4+r}, v25")
            a(f"v_max3_f32 v27, |v{Y+8+r}|, |v{Y+12+r}|, v27")
        a("v_cmp_gt_u32 vcc, 2, v4")
        a("v_cndmask_b32 v25, 0, v25, vcc")
        a("v_cndmask_b32 v27, 0, v27, vcc")
        a("v_add_f32 v24, v24, v25")
        a("v_max_f32 v26, v26, v27")
        a("v_cmp_gt_u32 vcc, 3, v4")
        a("v_cndmask_b32 v24, 0, v24, vcc")
        a("v_cndmask_b32 v26, 0, v26, vcc")
        xsum16(a,24,28); xsum32(a,24,28)
        xmax16(a,26,28); xmax32(a,26,28)
        for sh in (8,4,2,1):
            a(f"v_mov_b32_dpp v28, v24 row_ror:{sh} row_mask:0xf bank_mask:0xf")
            a(f"v_max_f32 v24, v24, v28")
            a(f"v_mov_b32_dpp v29, v26 row_ror:{sh} row_mask:0xf bank_mask:0xf")
            a(f"v_max_f32 v26, v26, v29")
        a(f"s_lshl_b32 s37, s{S_RB}, 2")
        a(f"s_add_u32 s37, s37, s{S_W}")
        a("s_lshl_b32 s37, s37, 2")
        a("v_mov_b32 v28, s37")
        a("v_mov_b32 v18, 0x7fffffff")
        a("v_cmp_eq_u32 vcc, 0, v1")
        a("v_cndmask_b32 v28, v18, v28, vcc")
        a("buffer_store_dword v24, v28, s[24:27], 0 offen"+SC)
        a("buffer_store_dword v26, v28, s[24:27], 0 offen offset:512"+SC)
        a("s_waitcnt lgkmcnt(0)")
        a("s_barrier")
        a(f"s_lshr_b32 s37, s{S_RB}, 3")
        a(f"s_mul_i32 s37, s37, {KV_STAGE}")
        a(f"s_and_b32 s38, s{S_RB}, 7")
        for rep in range(2):
            a(f"v_add_u32 v16, {256*rep}, v0")
            a("v_lshlrev_b32 v17, 4, v16")
            a(f"v_add_u32 v19, {LDS_KVI}, v17")
            a(f"v_cmp_gt_u32 vcc, 312, v16")
            a("s_and_saveexec_b64 s[40:41], vcc")
            a("ds_read_b128 v[20:23], v19")
            a("s_mov_b64 exec, s[40:41]")
            a("s_lshl_b32 s39, s38, 11"); a("s_add_u32 s39, s39, s37")
            a("v_add_u32 v24, s39, v17")
            a("s_lshl_b32 s39, s38, 8"); a("s_add_u32 s39, s39, s37"); a(f"s_add_u32 s39, s39, {KV_K2-2048}")
            a("v_add_u32 v25, s39, v17")
            a("s_mul_i32 s39, s38, 2432"); a("s_add_u32 s39, s39, s37"); a(f"s_add_u32 s39, s39, {KV_V-2560}")
            a("v_add_u32 v26, s39, v17")
            a("v_mov_b32 v27, 0x7fffffff")
            a("v_cmp_le_u32 vcc, 128, v16"); a("v_cndmask_b32 v24, v24, v25, vcc")
            a("v_cmp_le_u32 vcc, 144, v16"); a("v_cndmask_b32 v24, v24, v27, vcc")
            a("v_cmp_le_u32 vcc, 160, v16"); a("v_cndmask_b32 v24, v24, v26, vcc")
            a("v_cmp_le_u32 vcc, 312, v16"); a("v_cndmask_b32 v24, v24, v27, vcc")
            a("s_waitcnt lgkmcnt(0)")
            a("buffer_store_dwordx4 v[20:23], v24, s[20:23], 0 offen"+SC)
```

```python
from asmlib import *
import os, struct
S=2048; D=576; H=32; DH=18; F=4608
ROWB=D*2
MAT=S*ROWB
A_X,A_WQ,A_WK,A_WV,A_WO,A_BX,A_WG,A_WU,A_WD,A_OUT,A_DBG,A_WS=[8*i for i in range(12)]
P_X,P_WQ,P_WK,P_WV,P_WO,P_BX,P_WG,P_WU,P_WD,P_OUT,P_DBG,P_WS=[64+2*i for i in range(12)]
S_RB,S_J,S_W,S_TAG=60,61,62,63
WS_FLAGS=0
FL_E=0; FL_GF=0x1000; FL_KVF=0x5000; FL_PK=0x6000; FL_BYTES=0x8000
WS_Q=0x8000
WS_KV=WS_Q+MAT
KV_STAGE=37888; KV_K2=16384; KV_V=18432; KV_BYTES=4*KV_STAGE
WS_NORM=WS_KV+0x28000
WS_O=WS_NORM+0x1000
WS_H=WS_O+MAT
WS_W=WS_H+MAT
WSTREAM=486*1024
WS_PART=WS_W+32*WSTREAM
WS_END=WS_PART+8*MAT
QSCALE=(DH**-0.5)*1.4426950408889634
EPS=1e-5
SC=" sc1"
PROF=os.environ.get("PROF")
WS_PROF=WS_END+0x10000

def f2u(x): return struct.unpack("<I",struct.pack("<f",x))[0]

def mk_srd(a, srd, ptr, nbytes, off=0):
    if off:
        a(f"s_add_u32 s{srd}, s{ptr}, {off}")
        a(f"s_addc_u32 s{srd+1}, s{ptr+1}, 0")
    else:
        a(f"s_mov_b32 s{srd}, s{ptr}")
        a(f"s_mov_b32 s{srd+1}, s{ptr+1}")
    a(f"s_mov_b32 s{srd+2}, {nbytes}")
    a(f"s_mov_b32 s{srd+3}, 0x20000")

def xop16(a, op, v, t):
    a(f"v_mov_b32 v{t}, v{v}"); a(f"v_permlane16_swap_b32 v{v}, v{t}"); a(f"{op} v{v}, v{v}, v{t}")
def xop32(a, op, v, t):
    a(f"v_mov_b32 v{t}, v{v}"); a(f"v_permlane32_swap_b32 v{v}, v{t}"); a(f"{op} v{v}, v{v}, v{t}")
def xsum16(a,v,t): xop16(a,"v_add_f32",v,t)
def xsum32(a,v,t): xop32(a,"v_add_f32",v,t)
def xmax16(a,v,t): xop16(a,"v_max_f32",v,t)
def xmax32(a,v,t): xop32(a,"v_max_f32",v,t)

NSTAMP=14
DET=os.environ.get("DET","")
def dstamp(a, det, i):
    if DET==det: stamp(a,i,True)
def stamp(a, i, force=False):
    if not PROF: return
    if DET and not force and i not in (0,13): return
    assert i<NSTAMP
    a("s_memtime s[4:5]")
    a("s_waitcnt lgkmcnt(0)")
    a(f"s_mov_b32 s{88+i}, s4")
def stamp_rt(a, i):
    if not PROF: return
    a("s_memrealtime s[4:5]")
    a("s_waitcnt lgkmcnt(0)")
    a(f"s_mov_b32 s{88+i}, s4")
def stamp_flush(a):
    if not PROF: return
    mk_srd(a,28,P_WS,262144,WS_PROF)
    a("v_lshrrev_b32 v1, 6, v0")
    a("s_lshl_b32 s4, s2, 2")
    a("v_add_u32 v1, s4, v1")
    a("v_lshlrev_b32 v1, 6, v1")
    for i in range(NSTAMP):
        a(f"v_mov_b32 v2, s{88+i}")
        a(f"buffer_store_dword v2, v1, s[28:31], 0 offen offset:{4*i}")

def flag_srd(a): mk_srd(a,28,P_WS,FL_BYTES,WS_FLAGS)

def signal(a, addr_s):
    L=a.newlabel("SIG")
    vm0=a.vm
    a("s_waitcnt vmcnt(0) lgkmcnt(0)")
    a("s_barrier")
    a(f"s_cmp_lg_u32 s{S_W}, 0")
    a(f"s_cbranch_scc1 {L}")
    flag_srd(a)
    a(f"v_mov_b32 v250, s{addr_s}")
    a(f"v_mov_b32 v251, s{S_TAG}")
    a("s_mov_b64 exec, 1")
    a("buffer_store_dword v251, v250, s[28:31], 0 offen sc1")
    a("s_mov_b64 exec, -1")
    a.label(L)
    a.vm=vm0

def poll(a, vaddr, x4addr=None):
    L=a.newlabel("POL"); E=a.newlabel("POLE")
    vm0=a.vm
    a(f"s_cmp_lg_u32 s{S_W}, 0")
    a(f"s_cbranch_scc1 {E}")
    flag_srd(a)
    a("s_mov_b32 s3, 0")
    a.label(L)
    a(f"buffer_load_dword v244, v{vaddr}, s[28:31], 0 offen sc1")
    if x4addr is not None:
        a(f"buffer_load_dwordx4 v[246:249], v{x4addr}, s[28:31], 0 offen sc1")
    a("s_waitcnt vmcnt(0)")
    a(f"v_xor_b32 v244, s{S_TAG}, v244")
    if x4addr is not None:
        for r in range(246,250):
            a(f"v_xor_b32 v{r}, s{S_TAG}, v{r}")
            a(f"v_or_b32 v244, v244, v{r}")
    a("v_cmp_ne_u32 vcc, 0, v244")
    a("s_add_u32 s3, s3, 1")
    a("s_cmp_gt_u32 s3, 0x40000")
    a(f"s_cbranch_scc1 {E}")
    a(f"s_cbranch_vccnz {L}")
    a.label(E)
    a("s_barrier")
    a.vm=vm0
```

```python
import sys
from mcommon import *
from m_splitk import *
from m_attn import *
from m_ffn import *
NAME="sequential_preLN__grouped_kv_mqa__glu_gated_bilinear__prompt"
HEADER=open("cdna_kernels/"+NAME+".s.ref").read().split("; Override launch")[0]
LDS=163840

def gf_addr(a, dst, k):
    a(f"s_lshl_b32 s{dst}, s{S_RB}, 7")
    a(f"s_lshl_b32 s3, s{S_J}, 2")
    a(f"s_add_u32 s{dst}, s{dst}, s3")
    a(f"s_add_u32 s{dst}, s{dst}, {FL_GF+k*0x1000}")

def group_poll_addr(a, v, k, n):
    a(f"v_and_b32 v{v}, 7, v0")
    a(f"v_min_u32 v{v}, {n-1}, v{v}")
    a(f"v_lshlrev_b32 v{v}, 2, v{v}")
    a(f"s_lshl_b32 s3, s{S_RB}, 7")
    a(f"s_add_u32 s3, s3, {FL_GF+k*0x1000}")
    a(f"v_add_u32 v{v}, s3, v{v}")

def mega():
    a=Asm()
    a("s_cmp_ge_u32 s2, 256")
    a("s_cbranch_scc1 MEGA_END")
    a("s_load_dwordx16 s[64:79], s[0:1], 0")
    a("s_load_dwordx8 s[80:87], s[0:1], 64")
    a("v_lshrrev_b32 v2, 6, v0")
    a(f"v_readfirstlane_b32 s{S_W}, v2")
    a("s_and_b32 s3, s2, 7")
    a("s_lshr_b32 s4, s3, 1")
    a("s_and_b32 s5, s3, 1")
    a("s_lshr_b32 s6, s2, 3")
    a("s_and_b32 s7, s6, 7")
    a("s_lshl_b32 s4, s4, 3")
    a(f"s_add_u32 s{S_RB}, s4, s7")
    a("s_lshr_b32 s6, s6, 3")
    a("s_lshl_b32 s5, s5, 2")
    a(f"s_add_u32 s{S_J}, s5, s6")
    a("s_waitcnt lgkmcnt(0)")
    a(f"s_load_dword s{S_TAG}, s[{P_WS}:{P_WS+1}], {WS_FLAGS+FL_E}")
    stamp(a,0); stamp_rt(a,12)
    a(f"s_cmp_ge_u32 s{S_J}, 6")
    a("s_cbranch_scc1 P1_NOTQ")
    st={}
    splitk_issue(a,'q',st)
    for j in range(4): st['load_x'](j); st['load_w'](j)
    st['load_x'](4)
    splitk_compute(a,'q',st)
    a("s_branch P1_DONE")
    a.label("P1_NOTQ")
    a(f"s_cmp_eq_u32 s{S_J}, 7")
    a("s_cbranch_scc1 P1_DONE")
    st={}
    splitk_issue(a,'kv',st)
    for j in range(4): st['load_x'](j); st['load_w'](j)
    st['load_x'](4)
    splitk_compute(a,'kv',st)
    a.label("P1_DONE")
    dstamp(a,'1',11)
    a("s_waitcnt lgkmcnt(0)")
    a(f"s_mul_i32 s{S_TAG}, s{S_TAG}, 0x9e3779b1")
    a(f"s_add_u32 s{S_TAG}, s{S_TAG}, 0x7f4a7c15")
    stamp(a,1)
    gf_addr(a,6,0)
    a(f"s_lshr_b32 s4, s{S_RB}, 3"); a("s_lshl_b32 s4, s4, 7")
    a(f"s_and_b32 s5, s{S_RB}, 7"); a("s_lshl_b32 s5, s5, 2")
    a("s_add_u32 s4, s4, s5"); a(f"s_add_u32 s4, s4, {FL_KVF}")
    a(f"s_cmp_eq_u32 s{S_J}, 6")
    a("s_cselect_b32 s6, s4, s6")
    signal(a,6)
    a(f"s_lshl_b32 s30, s{S_RB}, 3"); a(f"s_add_u32 s30, s30, s{S_J}"); a("s_lshl_b32 s30, s30, 2"); a(f"s_add_u32 s30, s30, s{S_W}")
    pack_task(a,30)
    a("s_add_u32 s30, s30, 1024")
    pack_task(a,30)
    a(f"s_cmp_lg_u32 s{S_J}, 7")
    a("s_cbranch_scc1 PK_DONE")
    a(f"s_lshl_b32 s30, s{S_RB}, 2"); a(f"s_add_u32 s30, s30, s{S_W}"); a("s_add_u32 s30, s30, 2048")
    a("s_cmp_ge_u32 s30, 2160")
    a("s_cbranch_scc1 PK_DONE")
    pack_task(a,30)
    a.label("PK_DONE")
    a(f"s_lshl_b32 s6, s{S_RB}, 3"); a(f"s_add_u32 s6, s6, s{S_J}"); a("s_lshl_b32 s6, s6, 2"); a(f"s_add_u32 s6, s6, {FL_PK}")
    signal(a,6)
    stamp(a,2)
    a("v_and_b32 v1, 63, v0")
    a("v_lshrrev_b32 v2, 3, v1"); a("v_lshlrev_b32 v2, 7, v2")
    a("v_and_b32 v3, 7, v1"); a("v_lshl_add_u32 v2, v3, 2, v2")
    a(f"v_add_u32 v2, {FL_KVF}, v2")
    a("v_subrev_u32 v3, 32, v1"); a("v_min_u32 v3, 5, v3"); a("v_lshlrev_b32 v3, 2, v3")
    a(f"s_lshl_b32 s3, s{S_RB}, 7"); a(f"s_add_u32 s3, s3, {FL_GF}")
    a("v_add_u32 v3, s3, v3")
    a("v_cmp_gt_u32 vcc, 32, v1")
    a("v_cndmask_b32 v2, v3, v2, vcc")
    poll(a,2)
    stamp(a,3)
    st={}
    attn_issue(a,st)
    attn_main(a,st)
    stamp(a,4)
    attn_epilogue(a)
    gf_addr(a,6,1)
    signal(a,6)
    group_poll_addr(a,2,1,8)
    a("v_and_b32 v3, 63, v0"); a("v_lshlrev_b32 v3, 4, v3"); a(f"v_add_u32 v3, {FL_PK}, v3")
    poll(a,2,3)
    stamp(a,5)
    ffn=FFN(a)
    a(f"s_cmp_ge_u32 s{S_J}, 6")
    a("s_cbranch_scc1 P3_SKIP")
    st={}
    dstamp(a,'3',1)
    splitk_issue(a,'o',st)
    for j in range(4): st['load_x'](j); st['load_w'](j)
    st['load_x'](4)
    splitk_compute(a,'o',st)
    dstamp(a,'3',11)
    gf_addr(a,6,2)
    signal(a,6)
    a.label("P3_SKIP")
    ffn.ring_setup()
    for i in range(RING): ffn.issue_w()
    group_poll_addr(a,11,2,6)
    a("s_waitcnt lgkmcnt(0)")
    poll(a,11)
    stamp(a,6)
    ffn.ln()
    stamp(a,7)
    ffn.main()
    stamp(a,10)
    gf_addr(a,6,3)
    signal(a,6)
    a(f"s_cmp_ge_u32 s{S_J}, 6")
    a("s_cbranch_scc1 MEGA_FIN")
    group_poll_addr(a,2,3,8)
    poll(a,2)
    stamp(a,11)
    reduce_phase(a)
    a(f"s_or_b32 s3, s{S_RB}, s{S_J}"); a(f"s_or_b32 s3, s3, s{S_W}")
    a("s_cmp_lg_u32 s3, 0")
    a("s_cbranch_scc1 MEGA_FIN")
    a(f"s_load_dword s4, s[{P_WS}:{P_WS+1}], {WS_FLAGS+FL_E}")
    a("s_waitcnt lgkmcnt(0)")
    a("s_add_u32 s4, s4, 1")
    flag_srd(a)
    a("v_mov_b32 v250, 0"); a("v_mov_b32 v251, s4")
    a("s_mov_b64 exec, 1")
    a("buffer_store_dword v251, v250, s[28:31], 0 offen sc1")
    a("s_mov_b64 exec, -1")
    a.label("MEGA_FIN")
    if PROF:
        a("s_waitcnt vmcnt(0)")
        stamp(a,9+4);
        stamp_rt(a,9)
        stamp_flush(a)
    a.label("MEGA_END")
    a("s_endpgm")
    return a

if __name__=="__main__":
    s=HEADER+f"; @launch grid=(256,1,1) block=(256,1,1) lds={LDS}\n"
    s+='.amdgcn_target "amdgcn-amd-amdhsa--gfx950"\n'
    s+=kernel_text(NAME+"_kernel",mega(),512,256)
    out=sys.argv[1] if len(sys.argv)>1 else "cdna_kernels/"+NAME+".s"
    open(out,"w").write(s)
    print("written",out,len(s))
```

```python
from ncommon import *
QA0,QA2,QB0,QB2=16,20,24,28
OA,OB=32,48
SA,SB=64,80
PA,PB=96,104
K0=[112,116]; K2=[120,122]
VV=[[124,128],[132,136]]
BOUND2=3600.0
VK,VK2,VVA=14,15,140
LDS_FB=152*1024
WOFLAG=178
G_ST=[None]

def mf16(d,a_,b_,c): return f"v_mfma_f32_32x32x16_bf16 v[{d}:{d+15}], v[{a_}:{a_+3}], v[{b_}:{b_+3}], {c}"
def mf8(d,a_,b_): return f"v_mfma_f32_32x32x8_bf16 v[{d}:{d+15}], v[{a_}:{a_+1}], v[{b_}:{b_+1}], v[{d}:{d+15}]"
def R16(d): return f"v[{d}:{d+15}]"

ORDER=os.environ.get("ATT_ORDER","b")
def valu_stream(Sx,Px):
    e=lambda i: f"v_exp_f32 v{Sx+i}, v{Sx+i}"
    c=lambda j: f"v_cvt_pk_bf16_f32 v{Px+j}, v{Sx+2*j}, v{Sx+2*j+1}"
    if ORDER=="a":
        seq=[e(0),e(1),e(2),c(0),e(3),e(4), c(1),e(5),e(6),c(2),e(7),e(8), c(3),e(9),e(10),c(4),e(11),e(12), c(5),e(13),e(14),e(15),c(6),c(7)]
    else:
        seq=[e(0),e(1),e(2),e(3),e(4),e(5), e(6),c(0),e(7),c(1),e(8),e(9), e(10),c(2),e(11),c(3),e(12),e(13), e(14),e(15),c(4),c(5),c(6),c(7)]
    return [seq[0:6],seq[6:12],seq[12:18],seq[18:24]]

def phase(a, Sx,Px, Sy,Qy0,Qy2, kbuf, Oy,Py,vbuf, extra=None, omode=None):
    g=valu_stream(Sx,Px)
    m=[mf16(Sy,K0[kbuf],Qy0,"0"), mf16(Oy,VV[vbuf][0],Py,"0" if omode=="first" else R16(Oy)), mf8(Sy,K2[kbuf],Qy2), mf16(Oy,VV[vbuf][1],Py+4,R16(Oy))]
    if omode=="skip": m[1]=None; m[3]=None
    for i in range(4):
        if m[i]: a(m[i])
        if extra and i<len(extra):
            for x in extra[i]:
                if callable(x): x(a)
                else: a(x)
        for x in g[i]: a(x)

def kv_dma_ins(i):
    r=[]
    if i%4==0: r+=["s_mov_b32 m0, s40","s_nop 0"]
    r.append(f"buffer_load_dwordx4 v8, s[8:11], s40 offen offset:{(i%4)*1024}"+SC+" lds")
    if i%4==3: r.append("s_add_u32 s40, s40, 4096")
    if i==9: r.append(f"s_add_u32 s40, s40, {KV_STAGE-8192}")
    return r

def attn_init(a):
    a("v_and_b32 v1, 63, v0")
    a("v_and_b32 v3, 31, v0")
    a("v_bfe_u32 v4, v0, 5, 1")
    a(f"s_lshl_b32 s32, s{S_J}, 2")
    a(f"s_add_u32 s32, s32, s{S_W}")
    mk_srd(a,8,P_WS,KV_BYTES,WS_KV)
    flag_srd(a)
    a(f"v_min_u32 v{WOFLAG+1}, 26, v1"); a(f"v_lshlrev_b32 v{WOFLAG+1}, 6, v{WOFLAG+1}"); a(f"v_add_u32 v{WOFLAG+1}, {FL_WO}, v{WOFLAG+1}")
    a("v_lshlrev_b32 v8, 4, v1")
    a(f"s_mul_i32 s40, s{S_W}, 10240")
    a(f"v_mov_b32 v{K2[0]+1}, 0x3f803f80"); a(f"v_mov_b32 v{K2[1]+1}, 0x3f803f80")
    a(f"v_mov_b32 v{VK}, v8")
    a(f"v_lshlrev_b32 v{VK2}, 2, v3")
    a(f"v_add_u32 v{VK2}, {KV_K2}, v{VK2}")
    a(f"v_mov_b32 v{VVA}, v3")
    a("v_cmp_le_u32 vcc, 19, v3")
    a(f"v_cndmask_b32 v{VVA}, v{VVA}, 4, vcc")
    a("v_subrev_u32 v141, 20, v3")
    a("v_cmp_gt_u32 vcc, 8, v141")
    a(f"v_cndmask_b32 v{VVA}, v{VVA}, 0, vcc")
    a(f"v_lshlrev_b32 v{VVA}, 4, v{VVA}")
    a("v_mul_u32_u24 v141, 304, v4")
    a(f"v_add_u32 v{VVA}, v{VVA}, v141")
    a(f"v_add_u32 v{VVA}, {KV_V}, v{VVA}")
    a("v_lshlrev_b32 v2, 3, v1")

def attn_issue(a, st, pre):
    pre(a)
    st['stat']=a.vtok()
    a(f"s_add_u32 s4, s{P_WS}, {WS_NORM}"); a(f"s_addc_u32 s5, s{P_WS+1}, 0"); a("s_movk_i32 s6, 1024"); a("s_mov_b32 s7, 0x20000")
    for i in range(10):
        for x in kv_dma_ins(i): a(x)
    st['dma0']=a.vtok()
    a("buffer_load_dwordx2 v[10:11], v2, s[4:7], 0 offen"+SC)
    a("buffer_load_dwordx2 v[12:13], v2, s[4:7], 0 offen offset:512"+SC)
    st['norm']=a.vtok()

def attn_main(a, st, b0_extra, mid_groups, b3_extra, b3_pre=None, qfin=None):
    G_ST[0]=st
    xstamp(a,'a')
    a.wait_vm(st['stat'])
    qfin(a)
    a("v_mov_b32 v142, 0"); a("v_mov_b32 v143, 0")
    for r in range(4):
        a(f"v_dot2c_f32_bf16 v142, v{QA0+r}, v{QA0+r}")
        a(f"v_dot2c_f32_bf16 v143, v{QB0+r}, v{QB0+r}")
    a(f"v_dot2c_f32_bf16 v142, v{QA2}, v{QA2}")
    a(f"v_dot2c_f32_bf16 v143, v{QB2}, v{QB2}")
    xsum32(a,142,141); xsum32(a,143,141)
    a("v_max_f32 v142, v142, v143")
    a.wait_vm(st['norm'])
    xstamp(a,'a')
    a("v_max_f32 v10, v10, v11")
    a("v_max_f32 v12, v12, v13")
    for sh in (8,4,2,1):
        a(f"v_mov_b32_dpp v11, v10 row_ror:{sh} row_mask:0xf bank_mask:0xf")
        a(f"v_mov_b32_dpp v13, v12 row_ror:{sh} row_mask:0xf bank_mask:0xf")
        a("v_max_f32 v10, v10, v11")
        a("v_max_f32 v12, v12, v13")
    xmax16(a,10,11); xmax16(a,12,13); xmax32(a,10,11); xmax32(a,12,13)
    a("v_mul_f32 v142, v142, v10")
    a(f"s_mov_b32 s42, {f2u(BOUND2/1.03)}")
    a("v_cmp_nle_f32 vcc, v142, s42")
    a(f"s_mov_b32 s43, {f2u(1e12)}")
    a("v_cmp_nle_f32 s[46:47], v12, s43")
    a("s_or_b64 s[46:47], vcc, s[46:47]")
    if os.environ.get("ATT_FORCE_FB"): a("s_mov_b64 s[46:47], -1")
    a("s_cmp_lg_u64 s[46:47], 0")
    a("s_cselect_b32 s45, 1, 0")
    a("v_mov_b32 v10, s45")
    a(f"s_lshl_b32 s45, s{S_W}, 2")
    a(f"s_add_u32 s45, s45, {LDS_FB}")
    a("v_mov_b32 v11, s45")
    a("ds_write_b32 v11, v10")
    xstamp(a,'a')
    a(f"s_waitcnt lgkmcnt(0)")
    a("s_barrier")
    a(f"v_mov_b32 v11, {LDS_FB}")
    a("ds_read_b128 v[10:13], v11")
    a("s_waitcnt lgkmcnt(0)")
    a("v_or_b32 v10, v10, v11"); a("v_or_b32 v12, v12, v13"); a("v_or_b32 v10, v10, v12")
    a("v_readfirstlane_b32 s45, v10")
    a("s_cmp_eq_u32 s45, 0")
    a("s_cbranch_scc1 ATT_GO")
    vm0=a.vm
    a("s_mov_b32 s48, s40")
    for g in range(3):
        for i in range(10):
            for x in kv_dma_ins(i): a(x)
    a("s_mov_b32 s40, s48")
    a.vm=vm0
    a("s_waitcnt vmcnt(0)")
    a("s_barrier")
    a(f"v_mov_b32 v142, v{VK}")
    a(f"v_mov_b32 v143, v{VK2}")
    a(f"v_mov_b32 v176, 0xff800000"); a(f"v_mov_b32 v177, 0xff800000")
    a("s_mov_b32 s44, 0")
    a.label("ATT_FB")
    a(f"ds_read_b128 v[{K0[0]}:{K0[0]+3}], v142")
    a(f"ds_read_b32 v{K2[0]}, v143")
    a("s_waitcnt lgkmcnt(0)")
    a(mf16(SA,K0[0],QA0,"0")); a(mf16(SB,K0[0],QB0,"0"))
    a("s_nop 9")
    a(mf8(SA,K2[0],QA2)); a(mf8(SB,K2[0],QB2))
    a("v_add_u32 v142, 1024, v142"); a("v_add_u32 v143, 128, v143")
    a("s_add_u32 s44, s44, 1")
    a("s_and_b32 s45, s44, 15")
    a("s_cmp_lg_u32 s45, 0")
    a("s_cselect_b32 s48, 0, 1")
    a(f"s_mul_i32 s49, s48, {KV_STAGE-16*1024}")
    a(f"s_mul_i32 s48, s48, {KV_STAGE-16*128}")
    a("v_add_u32 v142, s49, v142"); a("v_add_u32 v143, s48, v143")
    a("s_nop 7")
    for i in range(0,16,2):
        a(f"v_max3_f32 v176, v{SA+i}, v{SA+i+1}, v176")
    for i in range(0,16,2):
        a(f"v_max3_f32 v177, v{SB+i}, v{SB+i+1}, v177")
    a("s_cmp_lt_u32 s44, 64")
    a("s_cbranch_scc1 ATT_FB")
    xmax32(a,176,142); xmax32(a,177,142)
    a("v_cmp_gt_u32 vcc, 32, v1")
    for (m,q) in ((176,QA2+1),(177,QB2+1)):
        a(f"v_sub_f32 v{m}, 0, v{m}")
        a(f"v_cvt_pk_bf16_f32 v142, v{m}, v{m}")
        a("v_lshlrev_b32 v142, 16, v142")
        a(f"v_sub_f32 v142, v{m}, v142")
        a(f"v_cvt_pk_bf16_f32 v142, v{m}, v142")
        a(f"v_cndmask_b32 v{q}, 0, v142, vcc")
    a.label("ATT_GO")
    a(f"ds_read_b128 v[{K0[0]}:{K0[0]+3}], v{VK}")
    a(f"ds_read_b32 v{K2[0]}, v{VK2}")
    a("s_waitcnt lgkmcnt(0)")
    a(mf16(SA,K0[0],QA0,"0"))
    a("s_nop 9")
    a(mf8(SA,K2[0],QA2))
    a("s_nop 7")
    UNR=16
    def body(kind, extras):
        for u in range(UNR):
            b=u&1
            if kind=='mid' and u==1: a.wait_vm(st['pk1'])
            if kind=='mid' and u==13: a.wait_vm(st['pk2'])
            if u==UNR-1:
                if kind=='first': a.wait_vm(st['dma1']); a("s_barrier")
                elif kind=='mid': a.wait_vm(st['dmam']); a("s_barrier")
                kn,k2n=KV_STAGE,KV_STAGE
            else:
                kn,k2n=(u+1)*1024,(u+1)*128
            ex=[[f"ds_read_b128 v[{K0[b^1]}:{K0[b^1]+3}], v{VK} offset:{kn}"],
                [f"ds_read_b128 v[{VV[b][0]}:{VV[b][0]+3}], v{VVA} offset:{u*1216}"],
                [f"ds_read_b32 v{K2[b^1]}, v{VK2} offset:{k2n}"],
                [f"ds_read_b128 v[{VV[b][1]}:{VV[b][1]+3}], v{VVA} offset:{u*1216+608}"]]
            for sl in range(4): ex[sl]+=extras.get((u,0,sl),[])
            phase(a, SA,PA, SB,QB0,QB2, b, OB,PB,b^1, ex, omode=('skip' if u==0 else 'first' if u==1 else None) if kind=='first' else None)
            if kind=='first' and u==4: st['dma1']=a.vtok()
            if kind=='mid' and u==9: st['dmam']=a.vtok()
            a("s_waitcnt lgkmcnt(0)")
            ex=[[],[],[],[]]
            if u==UNR-1 and kind!='last':
                ex=[[f"v_add_u32 v{VK}, {KV_STAGE}, v{VK}"],[f"v_add_u32 v{VK2}, {KV_STAGE}, v{VK2}"],[f"v_add_u32 v{VVA}, {KV_STAGE}, v{VVA}"],[]]
                if kind=='mid': ex[3]=["s_add_u32 s44, s44, 1","s_cmp_lt_u32 s44, 2"]
            for sl in range(4): ex[sl]+=extras.get((u,1,sl),[])
            phase(a, SB,PB, SA,QA0,QA2, b^1, OA,PA,b, ex, omode='first' if (kind=='first' and u==0) else None)
    def spread(groups, slots):
        d={}
        assert len(groups)<=len(slots),(len(groups),len(slots))
        for g,s in zip(groups,slots): d.setdefault(s,[]).extend(g)
        return d
    ex={}
    for i in range(10): ex.setdefault((i//2,0,1+2*(i%2)),[]).extend(kv_dma_ins(i))
    slots=[(u,1,1) for u in range(0,16)]+[(15,1,3)]
    for k,v in spread(b0_extra,slots).items(): ex.setdefault(k,[]).extend(v)
    xstamp(a,'a')
    body('first',ex)
    xstamp(a,'a')
    a("s_mov_b32 s44, 0")
    a.label("ATT_LOOP")
    ex={}
    for i in range(10): ex.setdefault((i,0,1),[]).extend(kv_dma_ins(i))
    ex.setdefault((0,0,0),[]).append(f"buffer_load_dword v{WOFLAG}, v{WOFLAG+1}, s[28:31], 0 offen sc1")
    stg,cpg=mid_groups
    slots=[(u,p,s) for u in range(1,13) for p in range(2) for s in (3,)]
    for k,v in spread(stg,slots).items(): ex.setdefault(k,[]).extend(v)
    slots=[(u,p,s) for u in range(13,16) for p in range(2) for s in (1,3)]
    for k,v in spread(cpg,slots).items(): ex.setdefault(k,[]).extend(v)
    body('mid',ex)
    a("s_cbranch_scc1 ATT_LOOP")
    xstamp(a,'a')
    if b3_pre: b3_pre()
    xstamp(a,'a')
    slots=[(u,p,s) for u in range(0,16) for p in range(2) for s in (1,3)]
    body('last',spread(b3_extra,slots))
    xstamp(a,'a')
    b=(UNR-1)&1
    a("s_nop 1")
    a(mf16(OB,VV[b][0],PB,R16(OB))); a(mf16(OB,VV[b][1],PB+4,R16(OB)))

def attn_epilogue(a):
    mk_srd(a,16,P_WS,MAT,WS_O)
    a(f"s_mul_i32 s40, s{S_RB}, 73728")
    a("s_lshr_b32 s41, s32, 1"); a("s_lshl_b32 s41, s41, 10"); a("s_add_u32 s41, s41, s40")
    a("s_and_b32 s42, s32, 1"); a("s_lshl_b32 s42, s42, 9"); a("s_add_u32 s41, s41, s42")
    a("v_lshrrev_b32 v8, 4, v3"); a("v_mul_u32_u24 v8, 18432, v8")
    a("v_and_b32 v9, 15, v3"); a("v_lshl_add_u32 v8, v9, 4, v8")
    a("v_lshl_add_u32 v6, v4, 8, v8"); a("v_add_u32 v6, s41, v6")
    a(f"s_lshr_b32 s41, s{S_J}, 2"); a("s_add_u32 s41, s41, 16"); a("s_lshl_b32 s41, s41, 10"); a("s_add_u32 s41, s41, s40")
    a(f"s_and_b32 s42, s{S_J}, 3"); a("s_lshl_b32 s42, s42, 8"); a("s_add_u32 s41, s41, s42")
    a(f"s_lshl_b32 s42, s{S_W}, 2"); a("s_add_u32 s41, s41, s42")
    a("v_add_u32 v7, s41, v8")
    a("v_mov_b32 v9, 0x7fffffff")
    a("v_cmp_eq_u32 vcc, 0, v4")
    a("v_cndmask_b32 v7, v9, v7, vcc")
    a("s_mov_b32 s38, 36864")
    for (O,T,so) in ((OA,96,"0"),(OB,104,"s38")):
        a(f"v_mov_b32 v10, v{O+10}"); a(f"v_mov_b32 v11, v{O+10}")
        a("v_permlane32_swap_b32 v10, v11")
        a("v_rcp_f32 v10, v10")
        for i in range(10): a(f"v_mul_f32 v{O+i}, v10, v{O+i}")
        for j in range(5): a(f"v_cvt_pk_bf16_f32 v{T+j}, v{O+2*j}, v{O+2*j+1}")
        a(f"v_permlane32_swap_b32 v{T}, v{T+2}")
        a(f"v_permlane32_swap_b32 v{T+1}, v{T+3}")
        a(f"buffer_store_dwordx4 v[{T}:{T+3}], v6, s[16:19], {so} offen"+SC)
        a(f"buffer_store_dword v{T+4}, v7, s[16:19], {so} offen"+SC)
```

```python
from ncommon import *
from n_p1 import pack_perm
T_BASE=73728
RING=54
EPK=eval(os.environ.get('EPK','(3,4,5)'))
PRE=int(os.environ.get('PRE','27'))
PRE0=int(os.environ.get('PRE0','4'))

def wgu_decode(a, T):
    a(f"s_mul_hi_u32 s42, s{T}, 0x71c71c8")
    a("s_mul_i32 s41, s42, 36"); a(f"s_sub_u32 s41, s{T}, s41")
    a("s_cmp_ge_u32 s42, 18"); a("s_cselect_b32 s43, 1, 0")
    a("s_mul_i32 s45, s43, 18"); a("s_sub_u32 s42, s42, s45")

def wgu_setup(a, T, srd, vreg):
    wgu_decode(a,T)
    a("s_cmp_eq_u32 s43, 0")
    a(f"s_cselect_b32 s{srd}, s{P_WG}, s{P_WU}"); a(f"s_cselect_b32 s{srd+1}, s{P_WG+1}, s{P_WU+1}")
    a(f"s_mov_b32 s{srd+2}, {D*F*2}"); a(f"s_mov_b32 s{srd+3}, 0x20000")
    a("s_mul_hi_u32 s45, s42, 0x55555556"); a("s_mul_i32 s46, s45, 3"); a("s_sub_u32 s46, s42, s46")
    a("s_mul_i32 s45, s45, 96"); a("s_lshl_b32 s46, s46, 1"); a("s_add_u32 s45, s45, s46")
    a(f"s_mul_i32 s45, s45, {F*2}"); a("s_lshl_b32 s46, s41, 8"); a("s_add_u32 s45, s45, s46")
    a("v_and_b32 v244, 63, v0")
    a("v_bfe_u32 v245, v244, 4, 1"); a("v_lshrrev_b32 v246, 5, v244"); a("v_mul_u32_u24 v246, 48, v246"); a("v_add_u32 v245, v245, v246")
    a(f"v_mul_u32_u24 v245, {F*2}, v245")
    a("v_and_b32 v246, 15, v244"); a("v_lshl_add_u32 v245, v246, 4, v245")
    a(f"v_add_u32 v{vreg}, s45, v245")

def wd_decode(a, T):
    a(f"s_mul_hi_u32 s41, s{T}, 0x2aaaaaab")
    a("s_mul_i32 s42, s41, 6"); a(f"s_sub_u32 s42, s{T}, s42")
    a("s_mul_hi_u32 s43, s41, 0xe38e38f")
    a("s_mul_i32 s44, s43, 18"); a("s_sub_u32 s44, s41, s44")

def wd_setup(a, T, srd, vreg):
    wd_decode(a,T)
    mk_srd(a,srd,P_WD,F*D*2)
    a("s_lshr_b32 s45, s44, 2"); a("s_and_b32 s46, s44, 3"); a("s_lshl_b32 s46, s46, 1")
    a("s_sub_u32 s47, s44, 16"); a("s_lshl_b32 s47, s47, 1")
    a("s_cmp_lt_u32 s44, 16")
    a("s_cselect_b32 s45, s45, s47")
    a("s_cselect_b32 s46, s46, 8")
    a("s_cselect_b32 s47, 0, 1")
    a("s_cselect_b32 s48, 1, 0")
    a("s_lshr_b32 s49, s43, 1"); a("s_mul_i32 s49, s49, 9"); a("s_add_u32 s46, s46, s49"); a("s_lshl_b32 s46, s46, 7")
    a("s_and_b32 s49, s43, 1"); a("s_lshl_b32 s49, s49, 2"); a("s_add_u32 s46, s46, s49"); a("s_add_u32 s46, s46, s45")
    a("s_lshl_b32 s48, s48, 7"); a("s_add_u32 s48, s48, s47"); a("s_add_u32 s48, s48, s46")
    a("v_and_b32 v244, 63, v0"); a("v_and_b32 v245, 15, v244"); a("v_lshrrev_b32 v246, 4, v244")
    a("v_mov_b32 v247, s46"); a("v_mov_b32 v248, s48")
    a("v_cmp_le_u32 vcc, 2, v246"); a("v_cndmask_b32 v247, v247, v248, vcc")
    a("v_and_b32 v248, 1, v246"); a("v_lshl_add_u32 v247, v248, 5, v247")
    a(f"v_mul_u32_u24 v247, {ROWB}, v247"); a("v_mul_u32_u24 v248, 12, v245"); a("v_add_u32 v247, v247, v248")
    a("s_mul_i32 s49, s42, 192"); a(f"v_add_u32 v{vreg}, s49, v247")

def task_ids(a):
    a(f"s_lshl_b32 s33, s{S_RB}, 3"); a(f"s_add_u32 s33, s33, s{S_J}"); a("s_lshl_b32 s33, s33, 2"); a(f"s_add_u32 s33, s33, s{S_W}")

PK_RAW=180
PK_VL1=30; PK_VL2=31
PK_VS1=22; PK_VS2=23
PK_OB=[244,248,252]
def wgu_sdesc(a, base, vs):
    a("s_mul_hi_u32 s45, s41, 0x1c71c71d"); a("s_mul_i32 s46, s45, 9"); a("s_sub_u32 s46, s41, s46")
    a(f"s_mul_i32 s45, s45, {8*WSTREAM}")
    a("s_mul_hi_u32 s47, s46, 0x55555556"); a("s_mul_i32 s48, s47, 3"); a("s_sub_u32 s48, s46, s48")
    a("s_mul_i32 s47, s47, 36"); a("s_lshl_b32 s49, s42, 1"); a("s_add_u32 s47, s47, s49"); a("s_mul_i32 s47, s47, 3072")
    a("s_add_u32 s45, s45, s47"); a("s_lshl_b32 s48, s48, 10"); a("s_add_u32 s45, s45, s48")
    a("s_lshl_b32 s43, s43, 8"); a(f"s_add_u32 s{base[0]}, s45, s43")
    for k in range(1,4): a(f"s_mov_b32 s{base[k]}, {WSTREAM}")
    a("v_and_b32 v244, 63, v0")
    a("v_bfe_u32 v245, v244, 4, 1"); a("v_mul_u32_u24 v245, 3072, v245")
    a("v_lshrrev_b32 v246, 5, v244"); a("v_lshl_add_u32 v245, v246, 9, v245")
    a("v_and_b32 v246, 15, v244"); a(f"v_lshl_add_u32 v{vs}, v246, 4, v245")
def wd_sdesc(a, base, vs):
    for h in range(2):
        a("s_mul_i32 s45, s42, 6"); a(f"s_add_u32 s45, s45, {3*h}")
        a("s_mul_hi_u32 s46, s45, 0x1c71c71d"); a("s_mul_i32 s47, s46, 9"); a("s_sub_u32 s47, s45, s47")
        a("s_mul_hi_u32 s47, s47, 0x55555556")
        a("s_mul_i32 s47, s47, 18"); a("s_add_u32 s47, s47, s44"); a("s_mul_i32 s47, s47, 3072")
        a("s_lshl_b32 s48, s43, 2"); a("s_add_u32 s46, s46, s48"); a(f"s_mul_i32 s46, s46, {WSTREAM}")
        a("s_add_u32 s46, s46, s47"); a(f"s_add_u32 s{base[0] if h==0 else 49}, s46, {324*1024}")
    a(f"s_movk_i32 s{base[1]}, 1024")
    a(f"s_sub_u32 s{base[2]}, s49, s{base[0]}"); a(f"s_sub_u32 s{base[2]}, s{base[2]}, 2048")
    a(f"s_mov_b32 s{base[3]}, 0x40000000")
    a("v_and_b32 v244, 63, v0"); a(f"v_lshlrev_b32 v{vs}, 4, v244")
SD1=(33,34,35,36); SD2=(52,53,54,55)
def pack_setup(a):
    a(f"s_lshl_b32 s5, s{S_RB}, 3"); a(f"s_add_u32 s5, s5, s{S_J}"); a("s_lshl_b32 s5, s5, 2"); a(f"s_add_u32 s5, s5, s{S_W}")
    wgu_setup(a,5,68,PK_VL1)
    wgu_sdesc(a,SD1,PK_VS1)
    LW=a.newlabel("PKW"); LE=a.newlabel("PKE")
    a("s_cmp_ge_u32 s5, 272"); a(f"s_cbranch_scc1 {LW}")
    a("s_add_u32 s5, s5, 1024")
    wgu_setup(a,5,72,PK_VL2)
    wgu_sdesc(a,SD2,PK_VS2)
    a(f"s_mov_b32 s66, {6*F*2}"); a(f"s_mov_b32 s67, {6*F*2}")
    a(f"s_branch {LE}")
    a.label(LW)
    a("s_sub_u32 s5, s5, 272")
    wd_setup(a,5,72,PK_VL2)
    wd_sdesc(a,SD2,PK_VS2)
    a(f"s_mov_b32 s66, {8*ROWB}"); a(f"s_mov_b32 s67, {40*ROWB}")
    a.label(LE)
PK_RAWB=212
def pack_b0_groups(st):
    g=[[f"s_add_u32 s48, s{P_WS}, {WS_W}", f"s_addc_u32 s49, s{P_WS+1}, 0", f"s_mov_b32 s50, {32*WSTREAM}", "s_mov_b32 s51, 0x20000",
        "s_mov_b32 s42, 0x05040100","s_mov_b32 s43, 0x07060302","s_mov_b32 s56, 0","s_mov_b32 s57, 0"]]
    for i in range(8):
        g.append([f"buffer_load_dwordx4 v[{PK_RAW+4*i}:{PK_RAW+4*i+3}], v{PK_VL1}, s[68:71], s56 offen"]+([f"s_add_u32 s56, s56, {6*F*2}"] if i<7 else []))
    def tk(a): st['pk1']=a.vtok()
    g[-1].append(tk)
    for i in range(8):
        g.append([f"buffer_load_dwordx4 v[{PK_RAWB+4*i}:{PK_RAWB+4*i+3}], v{PK_VL2}, s[72:75], s57 offen"]+([f"s_add_u32 s57, s57, s{67 if i==3 else 66}"] if i<7 else []))
    def tk2(a): st['pk2']=a.vtok()
    g[-1].append(tk2)
    return g
def pack_mid_groups():
    st=[]
    for e in range(8):
        ob=PK_OB[e%3]
        for half in range(2):
            ins=[]
            for r in (2*half,2*half+1):
                sel="s42" if (e&1)==0 else "s43"
                ins.append(f"v_perm_b32 v{ob+r}, v{PK_RAW+4*(2*r+1)+(e>>1)}, v{PK_RAW+4*(2*r)+(e>>1)}, {sel}")
            if half==1:
                ins.append(f"buffer_store_dwordx4 v[{ob}:{ob+3}], v{PK_VS1}, s[48:51], s33 offen"+SC)
                if e<7:
                    d={2:35,5:36}.get(e,34)
                    ins.append(f"s_add_u32 s33, s33, s{d}")
            st.append(ins)
    cp=[]
    mv=[f"v_mov_b32 v{PK_RAW+i}, v{PK_RAWB+i}" for i in range(32)]
    for k in range(11): cp.append(mv[3*k:3*k+3])
    cp.append(["s_mov_b32 s33, s52","s_mov_b32 s34, s53","s_mov_b32 s35, s54","s_mov_b32 s36, s55",f"v_mov_b32 v{PK_VS1}, v{PK_VS2}"])
    lead=cp[0]
    return st,cp

def wd_store(a, T, raw, ob):
    wd_decode(a,T)
    pack_perm(a,6,raw,ob)
    a("v_and_b32 v244, 63, v0"); a("v_lshlrev_b32 v245, 4, v244")
    for h in range(2):
        a("s_mul_i32 s45, s42, 6"); a(f"s_add_u32 s45, s45, {3*h}")
        a("s_mul_hi_u32 s46, s45, 0x1c71c71d"); a("s_mul_i32 s47, s46, 9"); a("s_sub_u32 s47, s45, s47")
        a("s_mul_hi_u32 s47, s47, 0x55555556")
        a("s_mul_i32 s47, s47, 18"); a("s_add_u32 s47, s47, s44"); a("s_mul_i32 s47, s47, 3072")
        a("s_lshl_b32 s48, s43, 2"); a("s_add_u32 s46, s46, s48"); a(f"s_mul_i32 s46, s46, {WSTREAM}")
        a("s_add_u32 s46, s46, s47"); a(f"s_add_u32 s46, s46, {324*1024}")
        for t in range(3):
            e=3*h+t
            a(f"buffer_store_dwordx4 v[{ob+4*e}:{ob+4*e+3}], v245, s[24:27], s46 offen offset:{t*1024}"+SC)

def pack_third(a, ob=64):
    L=a.newlabel("PK3")
    vm0=a.vm
    a(f"s_lshl_b32 s34, s{S_RB}, 1"); a(f"s_add_u32 s34, s34, s{S_J}"); a("s_sub_u32 s34, s34, 6"); a("s_lshl_b32 s34, s34, 2"); a(f"s_add_u32 s34, s34, s{S_W}")
    a("s_cmp_ge_u32 s34, 112"); a(f"s_cbranch_scc1 {L}")
    a("s_add_u32 s34, s34, 752")
    mk_srd(a,24,P_WS,32*WSTREAM,WS_W)
    wd_setup(a,34,16,PK_VL2)
    for i in range(8):
        a(f"s_mov_b32 s20, {(64*(i>>2)+8*(i&3))*ROWB}")
        a(f"buffer_load_dwordx4 v[{PK_RAW+4*i}:{PK_RAW+4*i+3}], v{PK_VL2}, s[16:19], s20 offen")
    a("s_waitcnt vmcnt(0)")
    wd_store(a,34,PK_RAW,ob)
    a.label(L)
    a.vm=vm0

def wo_frag_groups(a):
    g=[]
    for n in range(54):
        ins=[f"buffer_load_dwordx4 a[{4*n}:{4*n+3}], v8, s[12:15], s36 offen offset:{(n%4)*1024}"+SC]
        if n%4==3: ins.append("s_add_u32 s36, s36, 4096")
        g.append(ins)
    return g
def wo_frag_setup(a):
    mk_srd(a,12,P_WS,WO_BYTES,WS_WO)
    a(f"s_lshr_b32 s36, s{S_J}, 1"); a("s_min_u32 s36, s36, 2"); a("s_lshl_b32 s36, s36, 2"); a(f"s_add_u32 s36, s36, s{S_W}")
    a(f"s_mul_i32 s36, s36, {54*1024}")

XR=144
def p3_xres(a):
    mk_srd(a,12,P_X,MAT)
    a("v_and_b32 v1, 63, v0"); a("v_and_b32 v3, 15, v1"); a("v_lshrrev_b32 v4, 4, v1")
    a(f"s_and_b32 s35, s{S_J}, 1"); a("s_lshl_b32 s35, s35, 5"); a(f"s_lshl_b32 s36, s{S_RB}, 6"); a("s_add_u32 s35, s35, s36")
    a(f"s_lshr_b32 s36, s{S_J}, 1"); a("s_lshl_b32 s36, s36, 1"); a(f"s_lshr_b32 s37, s{S_W}, 1"); a("s_add_u32 s36, s36, s37")
    a("v_add_u32 v5, s35, v3"); a(f"s_movk_i32 s37, {ROWB}")
    a("v_mul_u32_u24 v6, 48, v4"); a("s_mul_i32 s38, s36, 192"); a("v_add_u32 v6, s38, v6")
    a("v_mad_u32_u24 v5, v5, s37, v6")
    a(f"s_movk_i32 s38, {16*ROWB}")
    for mt in range(2):
        for i in range(3):
            q=XR+12*mt+4*i
            a(f"buffer_load_dwordx4 v[{q}:{q+3}], v5, s[12:15], {'s38' if mt else '0'} offen offset:{16*i}")

def p3(a, after_dma):
    mk_srd(a,8,P_WS,MAT,WS_O)
    a("v_lshlrev_b32 v2, 4, v1")
    a(f"s_mul_i32 s35, s{S_RB}, 73728"); a(f"s_and_b32 s36, s{S_J}, 1"); a("s_mul_i32 s36, s36, 36864"); a("s_add_u32 s35, s35, s36")
    a(f"s_mul_i32 s37, s{S_W}, 9216"); a("s_add_u32 s38, s35, s37")
    for i in range(9):
        if i%4==0:
            a("s_mov_b32 m0, s37"); a("s_nop 0")
        a(f"buffer_load_dwordx4 v2, s[8:11], s38 offen offset:{(i%4)*1024}"+SC+" lds")
        if i%4==3: a("s_add_u32 s37, s37, 4096"); a("s_add_u32 s38, s38, 4096")
    a("s_waitcnt vmcnt(0)")
    a("s_barrier")
    after_dma()
    OF=[[64,68],[72,76],[80,84]]; AC=32
    def rd(ks):
        b=ks%3
        for mt in range(2): a(f"ds_read_b128 v[{OF[b][mt]}:{OF[b][mt]+3}], v2 offset:{mt*18432+ks*1024}")
        return a.ltok()
    tok={0:rd(0),1:rd(1)}
    for ks in range(18):
        b=ks%3
        a.wait_lg(tok[ks])
        for e in range(3):
            n=ks*3+e
            for mt in range(2):
                d=AC+(e*2+mt)*4; c="0" if ks==0 else f"v[{d}:{d+3}]"
                a(f"v_mfma_f32_16x16x32_bf16 v[{d}:{d+3}], a[{4*n}:{4*n+3}], v[{OF[b][mt]}:{OF[b][mt]+3}], {c}")
                if e==0 and ks+2<18:
                    b2=(ks+2)%3
                    a(f"ds_read_b128 v[{OF[b2][mt]}:{OF[b2][mt]+3}], v2 offset:{mt*18432+(ks+2)*1024}")
                    if mt==1: tok[ks+2]=a.ltok()
    xstamp(a,'h')
    Lo=a.newlabel("P3O"); Le=a.newlabel("P3E")
    a(f"s_and_b32 s36, s{S_W}, 1"); a("s_cmp_lg_u32 s36, 0"); a(f"s_cbranch_scc1 {Lo}")
    for p in range(2):
        if p==1: a.label(Lo)
        for mt in range(2):
            for e in range(3):
                for r in range(4):
                    idx=6*r+3*p+e; src=XR+12*mt+idx//2; d=AC+(e*2+mt)*4+r
                    if idx&1: a(f"v_and_b32 v88, 0xffff0000, v{src}")
                    else: a(f"v_lshlrev_b32 v88, 16, v{src}")
                    a(f"v_add_f32 v{d}, v{d}, v88")
        if p==0: a(f"s_branch {Le}")
    a.label(Le)
    mk_srd(a,20,P_WS,MAT,WS_H)
    a(f"s_lshr_b32 s36, s{S_J}, 1"); a("s_lshl_b32 s36, s36, 1"); a(f"s_lshr_b32 s37, s{S_W}, 1"); a("s_add_u32 s36, s36, s37")
    a("s_mul_i32 s36, s36, 6"); a(f"s_and_b32 s37, s{S_W}, 1"); a("s_mul_i32 s37, s37, 3"); a("s_add_u32 s36, s36, s37")
    a("s_lshl_b32 s36, s36, 10"); a("s_add_u32 s36, s36, s35")
    a("v_lshrrev_b32 v5, 1, v4"); a("v_lshlrev_b32 v5, 9, v5"); a("v_lshl_add_u32 v5, v3, 4, v5"); a("v_and_b32 v6, 1, v4"); a("v_lshl_add_u32 v5, v6, 3, v5")
    for e in range(3):
        for mt in range(2):
            d=AC+(e*2+mt)*4
            a(f"v_cvt_pk_bf16_f32 v{d}, v{d}, v{d+1}"); a(f"v_cvt_pk_bf16_f32 v{d+1}, v{d+2}, v{d+3}")
            a(f"buffer_store_dwordx2 v[{d}:{d+1}], v5, s[20:23], s36 offen offset:{e*1024+mt*256}"+SC)

XF=[[16,20],[24,28]]
TF=[[16,20,24,28],[32,36,40,44]]
def ACC(set_,t,mt): return 64+set_*96+(t*2+mt)*16
def ACCB(set_,t,j): return 64+set_*48+(t*4+j)*4

class FFN:
    def __init__(self,a): self.a=a; self.n=0; self.wtok={}
    def ring_setup(self):
        a=self.a
        mk_srd(a,8,P_WS,32*WSTREAM,WS_W)
        a(f"s_lshl_b32 s37, s{S_J}, 2"); a(f"s_add_u32 s37, s37, s{S_W}")
        a(f"s_mul_i32 s37, s37, {WSTREAM}")
        a("v_and_b32 v2, 63, v0")
        a("v_lshlrev_b32 v2, 4, v2")
        a("v_add_u32 v7, s37, v2")
        a("s_mov_b32 s40, 0")
    def issue_w(self):
        a=self.a; n=self.n
        if n>=486: return
        if os.environ.get("NOW") and n>=54:
            self.wtok[n]=self.wtok[53]; self.n=n+1; return
        slot=n%RING
        a(f"buffer_load_dwordx4 a[{4*slot}:{4*slot+3}], v7, s[8:11], s40 offen offset:{(n%4)*1024}"+os.environ.get("WSC",SC))
        self.wtok[n]=a.vtok()
        if n%4==3: a("s_add_u32 s40, s40, 4096")
        self.n=n+1
    def ln(self):
        a=self.a
        mk_srd(a,12,P_WS,MAT,WS_H)
        mk_srd(a,16,P_WS,8*MAT,WS_PART)
        a("v_and_b32 v1, 63, v0")
        a("v_lshrrev_b32 v3, 5, v1"); a("v_lshlrev_b32 v3, 10, v3")
        a("v_bfe_u32 v4, v1, 4, 1"); a("v_lshl_add_u32 v3, v4, 9, v3")
        a("v_and_b32 v4, 15, v1"); a("v_lshl_add_u32 v3, v4, 4, v3")
        a(f"s_and_b32 s34, s{S_W}, 1"); a("s_lshl_b32 s34, s34, 8"); a(f"s_lshr_b32 s35, s{S_W}, 1"); a("s_mul_i32 s35, s35, 36864"); a("s_add_u32 s34, s34, s35")
        a("v_add_u32 v3, s34, v3")
        a(f"s_mul_i32 s33, s{S_RB}, 73728")
        a("v_add_u32 v5, s33, v3")
        HB=64
        for i in range(18):
            q=HB+4*i
            if i%2==0 and i: a(f"s_movk_i32 s35, {i*2048}") if i*2048<32768 else a(f"s_mov_b32 s35, {i*2048}")
            a(f"buffer_load_dwordx4 v[{q}:{q+3}], v5, s[12:15], {'s35' if i>=2 else '0'} offen offset:{2048*(i%2)}"+SC)
        htok=a.vtok()
        for _ in range(PRE0): self.issue_w()
        a("v_mov_b32 v8, 0"); a("v_mov_b32 v9, 0"); a("v_mov_b32 v10, 0x3f803f80"); a("v_mov_b32 v14, 0"); a("v_mov_b32 v15, 0")
        a.wait_vm(htok)
        xstamp(a,'l'); xstamp(a,'h')
        for i in range(72):
            a(f"v_dot2c_f32_bf16 v{8 if i%2==0 else 14}, v{HB+i}, v10")
            a(f"v_dot2c_f32_bf16 v{9 if i%2==0 else 15}, v{HB+i}, v{HB+i}")
            if i%6==5 and self.n<PRE: self.issue_w()
        a("v_add_f32 v8, v8, v14"); a("v_add_f32 v9, v9, v15")
        xsum16(a,8,11); xsum16(a,9,12); xsum32(a,8,11); xsum32(a,9,12)
        a(f"s_mov_b32 s38, {f2u(1.0/D)}")
        a("v_mul_f32 v8, s38, v8"); a("v_mul_f32 v9, s38, v9")
        a("v_fma_f32 v9, -v8, v8, v9")
        a("v_max_f32 v9, 0, v9")
        a(f"v_add_f32 v9, {f2u(EPS)}, v9")
        a("v_rsq_f32 v16, v9")
        a("v_mul_f32 v18, v8, v16")
        a("v_sub_f32 v18, 0, v18")
        a("v_mov_b32 v17, v16"); a("v_mov_b32 v19, v18")
        xstamp(a,'l')
        for i in range(18):
            q=HB+4*i
            for r in range(4):
                d=q+r; t=20+2*(r&1)+4*(i&1)
                a(f"v_lshlrev_b32 v{t}, 16, v{d}")
                a(f"v_and_b32 v{t+1}, 0xffff0000, v{d}")
                a(f"v_pk_fma_f32 v[{t}:{t+1}], v[{t}:{t+1}], v[16:17], v[18:19]")
                a(f"v_cvt_pk_bf16_f32 v{d}, v{t}, v{t+1}")
            a(f"ds_write_b128 v3, v[{q}:{q+3}] offset:{i*2048}")
            rem=PRE-self.n
            for _ in range(-(-rem//(18-i)) if rem>0 else 0): self.issue_w()
        xstamp(a,'l')
        a("v_and_b32 v11, 31, v1")
        a("v_lshrrev_b32 v13, 4, v11")
        a("v_lshlrev_b32 v13, 10, v13")
        a("v_lshrrev_b32 v14, 5, v1")
        a("v_lshl_add_u32 v13, v14, 8, v13")
        a("v_and_b32 v11, 15, v11")
        a("v_lshl_add_u32 v13, v11, 4, v13")
        a(f"s_lshl_b32 s38, s{S_W}, 14"); a(f"s_add_u32 s38, s38, {T_BASE}")
        a("v_add_u32 v8, s38, v13")
        a(f"s_lshr_b32 s38, s{S_W}, 1"); a("s_add_u32 s38, s38, 16"); a("s_lshl_b32 s38, s38, 12")
        a(f"s_and_b32 s39, s{S_W}, 1"); a("s_lshl_b32 s39, s39, 9"); a("s_add_u32 s38, s38, s39"); a(f"s_add_u32 s38, s38, {T_BASE}")
        a("v_add_u32 v9, s38, v13")
        a("v_add_u32 v10, 36864, v2")
        a("s_waitcnt lgkmcnt(0)")
        a("s_barrier")
    def main(self):
        a=self.a; issue_w=self.issue_w; wtok=self.wtok
        def xread(buf,ks):
            a(f"ds_read_b128 v[{XF[buf][0]}:{XF[buf][0]+3}], v2 offset:{ks*1024}")
            a(f"ds_read_b128 v[{XF[buf][1]}:{XF[buf][1]+3}], v10 offset:{ks*1024}")
            return a.ltok()
        def epiA(p):
            g=[]
            for t in range(3):
                for mt in range(2):
                    A=ACC(p&1,t,mt); c=3*p+t
                    g.append([f"v_mul_f32 v{A+i}, v{A+i}, v{A+8+i}" for i in range(4)])
                    g.append([f"v_mul_f32 v{A+i}, v{A+i}, v{A+8+i}" for i in range(4,8)])
                    g.append([f"v_cvt_pk_bf16_f32 v{A+8+j}, v{A+2*j}, v{A+2*j+1}" for j in range(4)])
                    if c<8: w=f"ds_write_b128 v8, v[{A+8}:{A+11}] offset:{mt*2048+(c>>1)*4096+(c&1)*512}"
                    else:   w=f"ds_write_b128 v9, v[{A+8}:{A+11}] offset:{mt*2048}"
                    g.append([w])
            return g
        step=0
        def xl(buf,ks):
            return [f"ds_read_b128 v[{XF[buf][0]}:{XF[buf][0]+3}], v2 offset:{ks*1024}", f"ds_read_b128 v[{XF[buf][1]}:{XF[buf][1]+3}], v10 offset:{ks*1024}"]
        xt=xread(0,0)
        pend=[]
        for p in range(3):
            for ks in range(36):
                buf=step&1
                n0=(p*36+ks)*3
                last=(p==2 and ks==35)
                a.wait_lg(xt)
                a.wait_vm(wtok[n0+2])
                nx=[] if (last or os.environ.get("NOX")) else xl(buf^1,(ks+1)%36)
                k=0
                for t in range(3):
                    slot=(n0+t)%RING
                    for mt in range(2):
                        A=ACC(p&1,t,mt); x=XF[buf][mt]
                        c="0" if ks==0 else f"v[{A}:{A+15}]"
                        if os.environ.get("FA16"):
                            for hh in range(2):
                                c2="0" if ks==0 else f"v[{A+4*hh}:{A+4*hh+3}]"
                                a(f"v_mfma_f32_16x16x32_bf16 v[{A+4*hh}:{A+4*hh+3}], a[{4*slot}:{4*slot+3}], v[{x}:{x+3}], {c2}")
                        else:
                            a(f"v_mfma_f32_32x32x16_bf16 v[{A}:{A+15}], a[{4*slot}:{4*slot+3}], v[{x}:{x+3}], {c}")
                        k+=1
                        if k<=2 and nx:
                            a(nx[k-1])
                            if k==2: xt=a.ltok()
                        if pend and ks>=1 and k in EPK:
                            for ins in pend.pop(0): a(ins)
                    issue_w()
                step+=1
            pend=epiA(p)
            xstamp(a,'f')
        for grp in pend:
            for ins in grp: a(ins)
        pend=[]
        a(f"v_add_u32 v11, {T_BASE}, v2")
        a(f"v_add_u32 v12, {T_BASE+36864}, v2")
        a(f"s_mul_i32 s41, s{S_J}, {MAT}"); a(f"s_mul_i32 s42, s{S_RB}, 73728"); a("s_add_u32 s41, s41, s42")
        a(f"s_mul_i32 s42, s{S_W}, 18432"); a("s_add_u32 s41, s41, s42")
        a("v_add_u32 v13, s41, v2")
        a("s_waitcnt lgkmcnt(0)")
        a("s_barrier")
        def tread(buf,sg):
            base,off=(11,sg*4096) if sg<9 else (12,(sg-9)*4096)
            for j in range(4):
                a(f"ds_read_b128 v[{TF[buf][j]}:{TF[buf][j]+3}], v{base} offset:{off+j*1024}")
            return a.ltok()
        def epiB(p):
            g=[]
            for t in range(3):
                for jp in range(2):
                    A0=ACCB(p&1,t,2*jp); A1=ACCB(p&1,t,2*jp+1)
                    g.append([f"v_cvt_pk_bf16_f32 v{A0}, v{A0}, v{A0+1}", f"v_cvt_pk_bf16_f32 v{A0+1}, v{A0+2}, v{A0+3}",
                              f"v_cvt_pk_bf16_f32 v{A0+2}, v{A1}, v{A1+1}", f"v_cvt_pk_bf16_f32 v{A0+3}, v{A1+2}, v{A1+3}"])
                    idx=(p*3+t)*2+jp
                    g.append([f"s_movk_i32 s43, {idx*1024}", f"buffer_store_dwordx4 v[{A0}:{A0+3}], v13, s[16:19], s43 offen"+SC])
            return g
        def tl(buf,sg):
            base,off=(11,sg*4096) if sg<9 else (12,(sg-9)*4096)
            return [f"ds_read_b128 v[{TF[buf][j]}:{TF[buf][j]+3}], v{base} offset:{off+j*1024}" for j in range(4)]
        step=0
        tt=tread(0,0)
        for p in range(3):
            for sg in range(18):
                buf=step&1
                n0=324+(p*18+sg)*3
                last=(p==2 and sg==17)
                a.wait_lg(tt)
                a.wait_vm(wtok[n0+2])
                nx=[] if last else tl(buf^1,(sg+1)%18)
                k=0
                for t in range(3):
                    slot=(n0+t)%RING
                    for j in range(4):
                        A=ACCB(p&1,t,j); x=TF[buf][j]
                        c="0" if sg==0 else f"v[{A}:{A+3}]"
                        a(f"v_mfma_f32_16x16x32_bf16 v[{A}:{A+3}], a[{4*slot}:{4*slot+3}], v[{x}:{x+3}], {c}")
                        k+=1
                        if k%2==1 and k<=7 and nx:
                            a(nx[(k-1)//2])
                            if k==7: tt=a.ltok()
                        if pend and sg>=1 and k in (10,):
                            for ins in pend.pop(0): a(ins)
                    issue_w()
                step+=1
            pend=epiB(p)
            xstamp(a,'f')
        for grp in pend:
            for ins in grp: a(ins)

def reduce_setup(a):
    a("v_and_b32 v1, 63, v0")
    mk_srd(a,8,P_WS,8*MAT,WS_PART)
    mk_srd(a,12,P_WS,MAT,WS_H)
    mk_srd(a,16,P_OUT,MAT)
    a(f"s_and_b32 s33, s{S_J}, 1")
    a(f"s_bfe_u32 s34, s{S_J}, 0x10001")
    a(f"s_lshr_b32 s35, s{S_J}, 2"); a("s_mul_i32 s35, s35, 3"); a(f"s_min_u32 s36, s{S_W}, 2"); a("s_add_u32 s35, s35, s36")
    a("v_and_b32 v3, 15, v1"); a("v_lshrrev_b32 v4, 4, v1")
    a("v_lshrrev_b32 v5, 3, v3"); a("v_and_b32 v6, 7, v3")
    a(f"s_mul_i32 s37, s{S_RB}, 73728"); a("s_mul_i32 s38, s35, 12288"); a("s_add_u32 s38, s38, s37")
    a("s_lshl_b32 s39, s33, 10"); a("s_add_u32 s38, s38, s39"); a("s_lshl_b32 s39, s34, 7"); a("s_add_u32 s38, s38, s39")
    a("v_lshlrev_b32 v2, 11, v5"); a("v_lshl_add_u32 v2, v4, 8, v2"); a("v_lshl_add_u32 v2, v6, 4, v2"); a("v_add_u32 v2, s38, v2")
    a("s_mul_i32 s38, s33, 36864"); a("s_add_u32 s38, s38, s37"); a("s_mul_i32 s39, s35, 6144"); a("s_add_u32 s38, s38, s39")
    a("s_lshl_b32 s39, s34, 7"); a("s_add_u32 s38, s38, s39")
    a("v_lshlrev_b32 v7, 10, v5"); a("v_and_b32 v8, 1, v4"); a("v_lshl_add_u32 v7, v8, 8, v7"); a("v_lshl_add_u32 v7, v6, 4, v7")
    a("v_lshrrev_b32 v9, 1, v4"); a("v_lshl_add_u32 v7, v9, 3, v7"); a("v_add_u32 v7, s38, v7")
    a(f"s_lshl_b32 s38, s{S_RB}, 6"); a("s_lshl_b32 s39, s33, 5"); a("s_add_u32 s38, s38, s39"); a("s_lshl_b32 s39, s34, 3"); a("s_add_u32 s38, s38, s39")
    a("v_lshl_add_u32 v10, v8, 4, v6"); a("v_add_u32 v10, s38, v10")
    a("v_lshl_add_u32 v11, v5, 1, v9"); a("v_mul_u32_u24 v11, 48, v11"); a("s_mul_i32 s39, s35, 192"); a("v_add_u32 v11, s39, v11")
    a(f"s_movk_i32 s38, {ROWB}"); a("v_mad_u32_u24 v10, v10, s38, v11")
    a("v_lshrrev_b32 v11, 1, v6")
    a("v_and_b32 v12, 1, v6"); a("v_mov_b32 v13, 0x3f80"); a("v_lshlrev_b32 v12, 4, v12"); a("v_lshlrev_b32 v13, v12, v13")
    for a_ in range(2):
        a(f"v_add_u32 v12, {2*a_}, v5"); a("v_cmp_eq_u32 vcc, v12, v4"); a("v_cndmask_b32 v14, 0, v13, vcc")
        for d in range(4):
            a(f"v_cmp_eq_u32 vcc, {d}, v11"); a(f"v_cndmask_b32 v{16+4*a_+d}, 0, v14, vcc")
def reduce_h(a):
    for P in range(3):
        for a_ in range(2):
            q=24+(P*2+a_)*2
            a(f"buffer_load_dwordx2 v[{q}:{q+1}], v7, s[12:15], 0 offen offset:{P*2048+a_*512}"+SC) if P<2 else None
    a("s_movk_i32 s40, 4096")
    for a_ in range(2):
        q=24+(4+a_)*2
        a(f"buffer_load_dwordx2 v[{q}:{q+1}], v7, s[12:15], s40 offen offset:{a_*512}"+SC)
def reduce_phase(a, htok):
    L=a.newlabel("RED")
    a(f"s_cmp_ge_u32 s{S_W}, 3"); a(f"s_cbranch_scc1 {L}")
    PB=64
    toks={}
    xstamp(a,'r')
    for s in range(8):
        for P in range(3):
            q=PB+(s*3+P)*4
            a(f"s_mov_b32 s40, {s*MAT+P*4096}")
            a(f"buffer_load_dwordx4 v[{q}:{q+3}], v2, s[8:11], s40 offen"+SC)
        toks[s]=a.vtok()
    xstamp(a,'r')
    AC=40
    a.wait_vm(htok)
    for P in range(3):
        for a_ in range(2):
            q=24+(P*2+a_)*2; d=AC+(P*2+a_)*4
            a(f"v_lshlrev_b32 v{d}, 16, v{q}"); a(f"v_and_b32 v{d+1}, 0xffff0000, v{q}")
            a(f"v_lshlrev_b32 v{d+2}, 16, v{q+1}"); a(f"v_and_b32 v{d+3}, 0xffff0000, v{q+1}")
    for s in range(8):
        a.wait_vm(toks[s])
        if s in (0,7): xstamp(a,'r')
        for P in range(3):
            q=PB+(s*3+P)*4
            for a_ in range(2):
                d=AC+(P*2+a_)*4
                a(f"v_mfma_f32_16x16x32_bf16 v[{d}:{d+3}], v[{16+4*a_}:{16+4*a_+3}], v[{q}:{q+3}], v[{d}:{d+3}]")
    a("v_cmp_gt_u32 vcc, 8, v3")
    O=24
    for r in range(4):
        for P in range(3):
            X=AC+(P*2)*4+r; Y=AC+(P*2+1)*4+r
            a(f"v_cndmask_b32 v12, v{X}, v{Y}, vcc")
            a(f"v_mov_b32_dpp v13, v12 row_ror:8 row_mask:0xf bank_mask:0xf")
            a(f"v_cndmask_b32 v14, v13, v{X}, vcc")
            a(f"v_cndmask_b32 v15, v{Y}, v13, vcc")
            a(f"v_cvt_pk_bf16_f32 v{O+3*r+P}, v14, v15")
    xstamp(a,'r')
    for i in range(3):
        a(f"buffer_store_dwordx4 v[{O+4*i}:{O+4*i+3}], v10, s[16:19], 0 offen offset:{16*i}")
    a.label(L)
```

```python
from ncommon import *
L_X=0; L_WQ=73728; L_WKV=L_WQ+384*144; L_ONES=156672; L_SCR=157696
QA0,QA2,QB0,QB2=16,20,24,28
WO_RAW=200; WO_OUT=160

def pack_perm(a, n, raw, ob, sr=50):
    a(f"s_mov_b32 s{sr}, 0x05040100"); a(f"s_mov_b32 s{sr+1}, 0x07060302")
    for e in range(n):
        for r in range(4):
            sel=f"s{sr}" if (e&1)==0 else f"s{sr+1}"
            a(f"v_perm_b32 v{ob+4*e+r}, v{raw+4*(2*r+1)+(e>>1)}, v{raw+4*(2*r)+(e>>1)}, {sel}")

def wo_task_cond(a, Lskip):
    a(f"s_cmp_lg_u32 s{S_J}, 0"); a(f"s_cbranch_scc1 {Lskip}")
    a(f"s_cmp_ge_u32 s{S_RB}, 27"); a(f"s_cbranch_scc1 {Lskip}")

def wo_decode(a):
    a(f"s_lshl_b32 s43, s{S_RB}, 2"); a(f"s_add_u32 s43, s43, s{S_W}")
    a("s_mul_hi_u32 s44, s43, 0xe38e38f")
    a("s_mul_i32 s45, s44, 18"); a("s_sub_u32 s45, s43, s45")

def wo_load(a):
    L=a.newlabel("WOL")
    vm0=a.vm
    wo_task_cond(a,L)
    wo_decode(a)
    mk_srd(a,16,P_WO,D*D*2)
    a("v_and_b32 v5, 15, v1"); a("v_lshrrev_b32 v6, 4, v1")
    a("v_mul_u32_u24 v7, 12, v5"); a("s_mul_i32 s46, s44, 192"); a("v_add_u32 v7, s46, v7")
    a("v_lshrrev_b32 v8, 1, v6"); a("v_mul_u32_u24 v8, 18, v8"); a("v_and_b32 v9, 1, v6"); a("v_lshl_add_u32 v8, v9, 3, v8")
    a("v_mul_u32_u24 v9, 72, v6")
    a("s_cmp_lt_u32 s45, 16")
    a("s_cselect_b64 s[46:47], -1, 0")
    a("s_mul_i32 s48, s45, 36"); a("s_sub_u32 s49, s45, 16"); a("s_mul_i32 s49, s49, 288")
    a("s_cmp_lt_u32 s45, 16"); a("s_cselect_b32 s48, s48, s49")
    a("v_cndmask_b32 v8, v9, v8, s[46:47]")
    a("v_add_u32 v8, s48, v8")
    a(f"v_mul_u32_u24 v8, {ROWB}, v8"); a("v_add_u32 v8, v8, v7")
    for i in range(8):
        a("s_cmp_lt_u32 s45, 16")
        a(f"s_mov_b32 s48, {(18*(i>>1)+16+(i&1))*ROWB}")
        a(f"s_cmov_b32 s48, {i*ROWB}")
        a(f"buffer_load_dwordx3 v[{WO_RAW+4*i}:{WO_RAW+4*i+2}], v8, s[16:19], s48 offen")
    a.label(L)
    a.vm=vm0

def wo_store(a):
    L=a.newlabel("WOS")
    vm0=a.vm
    wo_task_cond(a,L)
    wo_decode(a)
    pack_perm(a,6,WO_RAW,WO_OUT)
    mk_srd(a,16,P_WS,WO_BYTES,WS_WO)
    a("v_lshlrev_b32 v5, 4, v1")
    a("s_mul_i32 s46, s44, 36"); a("s_add_u32 s46, s46, s45"); a("s_mul_i32 s46, s46, 3072")
    a(f"s_add_u32 s47, s46, {18*3072}")
    for e in range(6):
        a(f"buffer_store_dwordx4 v[{WO_OUT+4*e}:{WO_OUT+4*e+3}], v5, s[16:19], s{46+e//3} offen offset:{(e%3)*1024}"+SC)
    a.label(L)
    a.vm=vm0

def x_dma(a):
    mk_srd(a,8,P_X,MAT)
    a(f"s_lshl_b32 s34, s{S_RB}, 6")
    a(f"s_movk_i32 s36, {ROWB}")
    a("v_lshrrev_b32 v5, 3, v1")
    a("v_and_b32 v6, 7, v1")
    a("v_lshrrev_b32 v7, 1, v5")
    a("v_xor_b32 v8, v6, v7")
    a("v_xor_b32 v9, 4, v8")
    a(f"s_lshl_b32 s37, s{S_W}, 4"); a("s_add_u32 s37, s37, s34")
    a("v_add_u32 v5, s37, v5")
    a("v_lshlrev_b32 v8, 4, v8"); a("v_lshlrev_b32 v9, 4, v9")
    a("v_mad_u32_u24 v8, v5, s36, v8")
    a("v_add_u32 v5, 8, v5")
    a("v_mad_u32_u24 v9, v5, s36, v9")
    a(f"s_mul_i32 s45, s{S_W}, 18432")
    for g in range(2):
        for i in range(9):
            a("s_mov_b32 m0, s45")
            a(f"s_movk_i32 s46, {128*i}")
            a(f"buffer_load_dwordx4 v{8+g}, s[8:11], s46 offen lds")
            a("s_add_u32 s45, s45, 1024")

def wq_addr(a):
    mk_srd(a,12,P_WQ,D*D*2)
    a(f"s_mul_i32 s38, s{S_J}, 144")
    for n,(reg) in enumerate((126,127,128)):
        if n<2:
            a(f"s_lshl_b32 s39, s{S_W}, 7")
            if n: a("s_add_u32 s39, s39, 64")
            a(f"v_add_u32 v13, s39, v1")
        else: a("v_add_u32 v13, 512, v1")
        a("v_mul_u32_u24 v14, 7282, v13"); a("v_lshrrev_b32 v14, 16, v14")
        a("v_mul_u32_u24 v15, 9, v14"); a("v_sub_u32 v15, v13, v15")
        a(f"v_mul_u32_u24 v14, {ROWB}, v14"); a(f"v_lshl_add_u32 v{reg}, v15, 4, v14")
        a(f"v_add_u32 v{reg}, s38, v{reg}")
    a("v_subrev_u32 v127, 1024, v127")
    a(f"s_lshl_b32 s57, s{S_W}, 11"); a(f"s_add_u32 s57, s57, {L_WQ}")
    a("s_mov_b32 s56, 0")

def wq_ins(n):
    if n==0: return ["s_mov_b32 m0, s57", "s_add_u32 s57, s57, 9216", "buffer_load_dwordx4 v126, s[12:15], s56 offen lds"]
    return ["buffer_load_dwordx4 v127, s[12:15], s56 offen offset:1024 lds", f"s_add_u32 s56, s56, {64*ROWB}"]
def wq_cond(a, P):
    vm0=a.vm
    L=a.newlabel("WQ8")
    a(f"s_cmp_lg_u32 s{S_W}, {P&3}"); a(f"s_cbranch_scc1 {L}")
    a(f"s_mov_b32 m0, {L_WQ+(9*P+8)*1024}")
    a("s_nop 0")
    a(f"buffer_load_dwordx4 v128, s[12:15], s56 offen lds")
    a.label(L)
    a.vm=vm0
def wq_dma(a, P0, P1):
    for P in range(P0,P1):
        wq_cond(a,P)
        for n in range(2):
            for x in wq_ins(n): a(x)

def wkv_dma(a):
    a(f"s_cmp_eq_u32 s{S_J}, 6")
    a(f"s_cselect_b32 s16, s{P_WK}, s{P_WV}")
    a(f"s_cselect_b32 s17, s{P_WK+1}, s{P_WV+1}")
    a(f"s_mov_b32 s18, {D*DH*2}"); a("s_mov_b32 s19, 0x20000")
    for t in range(3):
        a(f"v_add_u32 v13, {64*t}, v1")
        a("v_mul_u32_u24 v14, 21846, v13"); a("v_lshrrev_b32 v14, 16, v14")
        a("v_mul_u32_u24 v15, 3, v14"); a("v_sub_u32 v15, v13, v15")
        a("v_mul_u32_u24 v14, 36, v14"); a(f"v_lshl_add_u32 v{116+t}, v15, 4, v14")
    vm0=a.vm
    for rep in range(3):
        L=a.newlabel("WKV")
        if rep==2:
            a(f"s_cmp_lg_u32 s{S_W}, 0"); a(f"s_cbranch_scc1 {L}")
        a(f"s_add_u32 s39, s{S_W}, {4*rep}")
        a("s_mul_i32 s40, s39, 2304")
        a("s_mul_i32 s39, s39, 3072"); a(f"s_add_u32 s39, s39, {L_WKV}")
        for t in range(3):
            a("s_mov_b32 m0, s39")
            a("s_nop 0")
            a(f"buffer_load_dwordx4 v{116+t}, s[16:19], s40 offen lds")
            a("s_add_u32 s39, s39, 1024")
        a.label(L)
    a.vm=vm0

def ones_init(a):
    a("v_mov_b32 v116, 0x3f803f80"); a("v_mov_b32 v117, 0x3f803f80"); a("v_mov_b32 v118, 0x3f803f80"); a("v_mov_b32 v119, 0x3f803f80")
    a("v_lshlrev_b32 v120, 4, v1"); a(f"v_add_u32 v120, {L_ONES}, v120")
    a("ds_write_b128 v120, v[116:119]")

def stats(a, rs, sq, out_mean, out_rstd, scale=None, n=D):
    a(f"s_mov_b32 s59, {f2u(1.0/n)}")
    a(f"v_mul_f32 v{out_mean}, s59, v{rs}")
    a(f"v_mul_f32 v{out_rstd}, s59, v{sq}")
    a(f"v_fma_f32 v{out_rstd}, -v{out_mean}, v{out_mean}, v{out_rstd}")
    a(f"v_max_f32 v{out_rstd}, 0, v{out_rstd}")
    a(f"v_add_f32 v{out_rstd}, {f2u(EPS)}, v{out_rstd}")
    a(f"v_rsq_f32 v{out_rstd}, v{out_rstd}")
    if scale is not None:
        a(f"s_mov_b32 s59, {f2u(scale)}")
        a(f"v_mul_f32 v{out_rstd}, s59, v{out_rstd}")

KVR=dict(AC0=32,AC1=36,CS0=40,CS1=44,ON=48,XF=[52,56,60],W0=[64,68,72],W1=[76,80,84],SSQ=88,XE=89,XO=90,VW0=91,VW1=92,VINC=93,SS=112,
         A1=130,A2=131,A3=132,A4=133)
def kv_setup(a):
    R=KVR; ON=R['ON']; XE,XO,VW0,VW1,VINC=R['XE'],R['XO'],R['VW0'],R['VW1'],R['VINC']
    a("v_and_b32 v3, 15, v1"); a("v_lshrrev_b32 v4, 4, v1")
    for i in range(4): a(f"v_mov_b32 v{ON+i}, 0x3f803f80")
    a("v_bfe_u32 v5, v1, 3, 1"); a(f"s_lshl_b32 s37, s{S_W}, 1"); a("v_add_u32 v5, s37, v5"); a("v_mul_u32_u24 v5, 9216, v5")
    a("v_and_b32 v6, 7, v1"); a("v_lshl_add_u32 v5, v6, 7, v5")
    a("v_lshrrev_b32 v6, 1, v3")
    a("v_xor_b32 v7, v6, v4"); a(f"v_lshl_add_u32 v{XE}, v7, 4, v5")
    a(f"v_xor_b32 v{XO}, 64, v{XE}")
    a("v_bfe_u32 v5, v1, 2, 2"); a("v_lshl_add_u32 v5, v4, 3, v5"); a("v_mul_u32_u24 v5, 48, v5")
    a("v_and_b32 v6, 3, v1"); a(f"v_lshl_add_u32 v{VW0}, v6, 3, v5"); a(f"v_add_u32 v{VW0}, {L_WKV}, v{VW0}")
    a(f"v_add_u32 v{VW1}, {L_WKV+32}, v5")
    a("v_cmp_eq_u32 vcc, 0, v6")
    a(f"v_mov_b32 v7, {L_ONES}"); a(f"v_cndmask_b32 v{VW1}, v7, v{VW1}, vcc")
    a(f"v_mov_b32 v7, 1536"); a(f"v_cndmask_b32 v{VINC}, 0, v7, vcc")
    mk_srd(a,20,P_WS,KV_BYTES,WS_KV)
    mk_srd(a,24,P_WS,1024,WS_NORM)
    mk_srd(a,16,P_WS,S*8,WS_STAT)
    a(f"s_lshr_b32 s37, s{S_RB}, 3"); a(f"s_mul_i32 s37, s37, {KV_STAGE}")
    a(f"s_and_b32 s38, s{S_RB}, 7")
    a("v_mov_b32 v15, 0x7fffffff")
    a("s_lshl_b32 s39, s38, 1"); a(f"s_lshr_b32 s40, s{S_W}, 1"); a("s_add_u32 s39, s39, s40")
    a(f"s_and_b32 s40, s{S_W}, 1"); a("s_lshl_b32 s40, s40, 4")
    a("v_add_u32 v13, s40, v3")
    a("v_and_b32 v14, 1, v4"); a("v_lshl_add_u32 v14, v14, 5, v13"); a("v_lshlrev_b32 v14, 4, v14")
    a("v_lshrrev_b32 v12, 1, v4"); a("v_lshl_add_u32 v14, v12, 3, v14")
    a("s_lshl_b32 s41, s39, 10"); a("s_add_u32 s41, s41, s37"); a(f"v_add_u32 v134, s41, v14")
    a("v_lshlrev_b32 v13, 2, v13"); a("s_lshl_b32 s41, s39, 7"); a("s_add_u32 s41, s41, s37"); a(f"s_add_u32 s41, s41, {KV_K2}"); a("v_add_u32 v13, s41, v13")
    a("v_cmp_eq_u32 vcc, 0, v4"); a("v_cndmask_b32 v135, v15, v13, vcc")
    a(f"s_lshl_b32 s39, s{S_RB}, 6"); a(f"s_lshl_b32 s40, s{S_W}, 4"); a("s_add_u32 s39, s39, s40")
    a("v_add_u32 v13, s39, v3"); a("v_lshlrev_b32 v13, 3, v13"); a("v_cndmask_b32 v136, v15, v13, vcc")
    a("s_lshl_b32 s39, s38, 2"); a(f"s_add_u32 s39, s39, s{S_W}"); a("s_mul_i32 s39, s39, 608"); a("s_add_u32 s39, s39, s37"); a(f"s_add_u32 s39, s39, {KV_V}")
    a("v_and_b32 v14, 1, v4"); a("v_mul_u32_u24 v14, 304, v14"); a("v_lshl_add_u32 v14, v3, 4, v14")
    a("v_lshl_add_u32 v14, v12, 3, v14"); a("v_add_u32 v137, s39, v14")
    a("v_add_u32 v14, 256, v137"); a("v_cmp_gt_u32 vcc, 3, v3"); a("v_cndmask_b32 v138, v15, v14, vcc")
    a(f"s_lshl_b32 s39, s{S_RB}, 2"); a(f"s_add_u32 s39, s39, s{S_W}"); a("s_lshl_b32 s39, s39, 2")
    a("v_mov_b32 v14, s39"); a("v_cmp_eq_u32 vcc, 0, v1"); a("v_cndmask_b32 v139, v15, v14, vcc")
    a(f"s_lshl_b32 s39, s{S_W}, 6"); a(f"s_add_u32 s39, s39, {L_SCR}")
    a("v_lshl_add_u32 v140, v3, 2, s39"); a("v_lshl_add_u32 v141, v4, 4, s39")

def kv_compute(a, isK):
    R=KVR
    AC0,AC1,CS0,CS1,ON=R['AC0'],R['AC1'],R['CS0'],R['CS1'],R['ON']
    XF,W0,W1,SSQ,SS=R['XF'],R['W0'],R['W1'],R['SSQ'],R['SS']
    XE,XO,VW0,VW1,VINC=R['XE'],R['XO'],R['VW0'],R['VW1'],R['VINC']
    def rd_list(ks):
        b=ks%3
        return [f"ds_read_b128 v[{XF[b]}:{XF[b]+3}], v{XE if ks%2==0 else XO} offset:{(ks>>1)*1024}",
                f"ds_read_b64_tr_b16 v[{W0[b]}:{W0[b]+1}], v{VW0} offset:{ks*1536}",
                f"ds_read_b64_tr_b16 v[{W0[b]+2}:{W0[b]+3}], v{VW0} offset:{ks*1536+192}",
                f"ds_read_b64_tr_b16 v[{W1[b]}:{W1[b]+1}], v{VW1}",
                f"ds_read_b64_tr_b16 v[{W1[b]+2}:{W1[b]+3}], v{VW1} offset:192",
                f"v_add_u32 v{VW1}, v{VW1}, v{VINC}"]
    if isK: xstamp(a,'k')
    tok={}
    for ks in (0,1):
        for x in rd_list(ks): a(x)
        tok[ks]=a.ltok()
    def mm(d,w,x,first):
        c="0" if first else f"v[{d}:{d+3}]"
        A,B=(w,x) if isK else (x,w)
        a(f"v_mfma_f32_16x16x32_bf16 v[{d}:{d+3}], v[{A}:{A+3}], v[{B}:{B+3}], {c}")
    for ks in range(18):
        b=ks%3
        a.wait_lg(tok[ks])
        nxt=rd_list(ks+2) if ks+2<18 else []
        ms=[(AC0,W0[b],XF[b]),(AC1,W1[b],XF[b]),(SS,XF[b],XF[b]),(CS0,W0[b],ON),(CS1,W1[b],ON)]
        fill=[nxt[0:1],nxt[1:3],nxt[3:5],nxt[5:6],[]]
        for i,(d,w,x) in enumerate(ms):
            mm(d,w,x,ks==0)
            for ins in fill[i]: a(ins)
        if nxt: tok[ks+2]=a.ltok()
        if ks<8:
            if ks%2==0: wq_cond(a,ks//2)
            for x in wq_ins(ks%2): a(x)
    if isK: xstamp(a,'k')
    a("v_and_b32 v5, 3, v1")
    a(f"v_mov_b32 v{SSQ}, v{SS}")
    for r in range(1,4):
        a(f"v_cmp_eq_u32 vcc, {r}, v5"); a(f"v_cndmask_b32 v{SSQ}, v{SSQ}, v{SS+r}, vcc")
    a("v_lshrrev_b32 v5, 2, v3"); a("v_cmp_eq_u32 vcc, v5, v4"); a(f"v_cndmask_b32 v{SSQ}, 0, v{SSQ}, vcc")
    xsum16(a,SSQ,5); xsum32(a,SSQ,5)
    if isK:
        a(f"v_mov_b32 v5, v{AC1}"); a(f"v_mov_b32 v6, v{AC1}"); a("v_permlane32_swap_b32 v5, v6")
        stats(a,6,SSQ,98,99)
        a("buffer_store_dwordx2 v[98:99], v136, s[16:19], 0 offen"+SC)
        for r in range(4):
            a(f"v_fma_f32 v{AC0+r}, -v98, v{CS0+r}, v{AC0+r}")
        for r in range(2):
            a(f"v_fma_f32 v{AC1+r}, -v98, v{CS1+r}, v{AC1+r}")
        for r in range(4): a(f"v_mul_f32 v{AC0+r}, v99, v{AC0+r}")
        for r in range(2): a(f"v_mul_f32 v{AC1+r}, v99, v{AC1+r}")
        a(f"v_cvt_pk_bf16_f32 v10, v{AC0}, v{AC0+1}"); a(f"v_cvt_pk_bf16_f32 v11, v{AC0+2}, v{AC0+3}")
        a(f"v_cvt_pk_bf16_f32 v12, v{AC1}, v{AC1+1}")
        a("buffer_store_dwordx2 v[10:11], v134, s[20:23], 0 offen"+SC)
        a("buffer_store_dword v12, v135, s[20:23], 0 offen"+SC)
        a("v_cmp_eq_u32 vcc, 0, v4")
        a(f"v_mul_f32 v9, v{AC1}, v{AC1}"); a(f"v_fma_f32 v9, v{AC1+1}, v{AC1+1}, v9"); a("v_cndmask_b32 v9, 0, v9, vcc")
        for r in range(4): a(f"v_fma_f32 v9, v{AC0+r}, v{AC0+r}, v9")
        xsum16(a,9,5); xsum32(a,9,5)
        for sh in (8,4,2,1):
            a(f"v_mov_b32_dpp v5, v9 row_ror:{sh} row_mask:0xf bank_mask:0xf"); a("v_max_f32 v9, v9, v5")
        noff=0
    else:
        a(f"ds_write_b32 v140, v{SSQ}")
        a("v_cmp_gt_u32 vcc, 4, v3")
        for r in range(4):
            a(f"v_mov_b32_dpp v5, v{AC1+r} row_ror:8 row_mask:0xf bank_mask:0xf")
            a(f"v_cndmask_b32 v{94+r}, v{AC1+r}, v5, vcc")
        a("s_waitcnt lgkmcnt(0)"); a("ds_read_b128 v[100:103], v141"); a("s_waitcnt lgkmcnt(0)")
        for r in range(4):
            stats(a,94+r,100+r,104+r,108+r)
        for r in range(4):
            a(f"v_fma_f32 v{AC0+r}, -v{104+r}, v{CS0+r}, v{AC0+r}"); a(f"v_fma_f32 v{AC1+r}, -v{104+r}, v{CS1+r}, v{AC1+r}")
        for r in range(4):
            a(f"v_mul_f32 v{AC0+r}, v{108+r}, v{AC0+r}"); a(f"v_mul_f32 v{AC1+r}, v{108+r}, v{AC1+r}")
        a("v_cmp_eq_u32 vcc, 2, v3")
        for r in range(4): a(f"v_cndmask_b32 v{AC1+r}, v{AC1+r}, 1.0, vcc")
        a(f"v_cvt_pk_bf16_f32 v10, v{AC0}, v{AC0+1}"); a(f"v_cvt_pk_bf16_f32 v11, v{AC0+2}, v{AC0+3}")
        a(f"v_cvt_pk_bf16_f32 v12, v{AC1}, v{AC1+1}"); a(f"v_cvt_pk_bf16_f32 v13, v{AC1+2}, v{AC1+3}")
        a("buffer_store_dwordx2 v[10:11], v137, s[20:23], 0 offen"+SC)
        a("buffer_store_dwordx2 v[12:13], v138, s[20:23], 0 offen"+SC)
        a(f"v_max3_f32 v9, |v{AC0}|, |v{AC0+1}|, |v{AC0+2}|"); a(f"v_max_f32 v9, |v{AC0+3}|, v9")
        a(f"v_max3_f32 v5, |v{AC1}|, |v{AC1+1}|, |v{AC1+2}|"); a(f"v_max_f32 v5, |v{AC1+3}|, v5")
        a("v_cmp_gt_u32 vcc, 2, v3"); a("v_cndmask_b32 v5, 0, v5, vcc"); a("v_max_f32 v9, v9, v5")
        xmax16(a,9,5); xmax32(a,9,5)
        for sh in (8,4,2,1):
            a(f"v_mov_b32_dpp v5, v9 row_ror:{sh} row_mask:0xf bank_mask:0xf"); a("v_max_f32 v9, v9, v5")
        noff=512
    a(f"buffer_store_dword v9, v139, s[24:27], 0 offen offset:{noff}"+SC)

QAC=[32,48]; QCS=84
def q_proj(a, mid_signal):
    AC=QAC; CSD=64; SEL=68
    AF=[72,76,80]; BF=[[96,100],[104,108],[112,116]]
    XA=[120,121,122,123]; VA=[124,125]
    SIGSTEP=10
    a("v_and_b32 v3, 15, v1"); a("v_lshrrev_b32 v4, 4, v1"); a("v_and_b32 v5, 1, v4")
    a("v_cmp_eq_u32 vcc, v3, v5"); a("v_mov_b32 v6, 0x3f803f80")
    for i in range(4): a(f"v_cndmask_b32 v{SEL+i}, 0, v6, vcc")
    a("v_and_b32 v5, 31, v1"); a("v_lshrrev_b32 v6, 5, v1")
    a("v_lshrrev_b32 v7, 3, v5"); a("v_mul_u32_u24 v7, 9216, v7"); a("v_and_b32 v8, 7, v1"); a("v_lshl_add_u32 v7, v8, 7, v7")
    a("v_bfe_u32 v8, v5, 1, 3")
    a("v_xor_b32 v8, v8, v6")
    for i in range(4):
        a(f"v_xor_b32 v9, {2*i}, v8"); a(f"v_lshl_add_u32 v{XA[i]}, v9, 4, v7")
    a("v_bfe_u32 v7, v1, 2, 2"); a("v_lshl_add_u32 v7, v6, 3, v7"); a("v_mul_u32_u24 v7, 144, v7")
    a("v_and_b32 v8, 3, v1"); a("v_lshl_add_u32 v7, v8, 3, v7")
    a("v_bfe_u32 v9, v1, 4, 1"); a("v_lshl_add_u32 v7, v9, 5, v7")
    a(f"s_mul_i32 s37, s{S_W}, 36"); a(f"s_and_b32 s38, s{S_W}, 1"); a("s_lshl_b32 s38, s38, 2"); a("s_sub_u32 s37, s37, s38"); a(f"s_add_u32 s37, s37, {L_WQ}")
    a(f"v_add_u32 v{VA[0]}, s37, v7")
    a(f"v_add_u32 v{VA[1]}, {18*2304}, v{VA[0]}")
    def rd_list(ks):
        b=ks%3; va=VA[ks//18]; off=(ks%18)*2304
        r=[f"ds_read_b64_tr_b16 v[{AF[b]}:{AF[b]+1}], v{va} offset:{off}",
           f"ds_read_b64_tr_b16 v[{AF[b]+2}:{AF[b]+3}], v{va} offset:{off+576}"]
        for mt in range(2):
            r.append(f"ds_read_b128 v[{BF[b][mt]}:{BF[b][mt]+3}], v{XA[ks&3]} offset:{(ks>>2)*1024+mt*36864}")
        return r
    tok={}
    for ks in (0,1):
        for x in rd_list(ks): a(x)
        tok[ks]=a.ltok()
    xstamp(a,"q")
    ptok={}
    loop0=a.vm
    for ks in range(36):
        b=ks%3
        if ks in (4,10,18,24,30): xstamp(a,"q")
        if ks%4==2 and ks//4+1<=8:
            X=ks//4+1
            if X<=3: n=a.vm-loop0+2*(3-X)
            else: n=a.vm-ptok[X]
            if X<=2:
                L1=a.newlabel("QW"); L2=a.newlabel("QW")
                a(f"s_cmp_ge_u32 s{S_J}, 6"); a(f"s_cbranch_scc1 {L1}")
                a(f"s_waitcnt vmcnt({n})"); a(f"s_branch {L2}")
                a.label(L1); a(f"s_waitcnt vmcnt({n+3})"); a.label(L2)
            else: a(f"s_waitcnt vmcnt({n})")
            a("s_barrier")
            if ks==SIGSTEP: mid_signal()
        a.wait_lg(tok[ks])
        nxt=rd_list(ks+2) if ks+2<36 else []
        dma=[]
        Pd=4+(ks-2)//4
        if ks>=2 and Pd<=8 and (ks-2)%4<2: dma=wq_ins((ks-2)%4)
        for mt in range(2):
            c="0" if ks==0 else f"v[{AC[mt]}:{AC[mt]+15}]"
            a(f"v_mfma_f32_32x32x16_bf16 v[{AC[mt]}:{AC[mt]+15}], v[{AF[b]}:{AF[b]+3}], v[{BF[b][mt]}:{BF[b][mt]+3}], {c}")
            for x in nxt[2*mt:2*mt+2]: a(x)
        if nxt: tok[ks+2]=a.ltok()
        c="0" if ks==0 else f"v[{CSD}:{CSD+3}]"
        a(f"v_mfma_f32_16x16x32_bf16 v[{CSD}:{CSD+3}], v[{AF[b]}:{AF[b]+3}], v[{SEL}:{SEL+3}], {c}")
        if ks>=2 and Pd<=8 and (ks-2)%4==0: wq_cond(a,Pd)
        for x in dma: a(x)
        if dma and (ks-2)%4==1: ptok[Pd]=a.vtok()
    xstamp(a,"q")
    a(f"s_lshl_b32 s37, s{S_W}, 7"); a(f"s_add_u32 s37, s37, {L_SCR+2048}")
    a("v_lshlrev_b32 v7, 6, v3"); a("v_lshl_add_u32 v7, v4, 4, v7"); a("v_add_u32 v7, s37, v7")
    a("v_cmp_gt_u32 vcc, 2, v3"); a("s_and_saveexec_b64 s[40:41], vcc")
    a(f"ds_write_b128 v7, v[{CSD}:{CSD+3}]")
    a("s_mov_b64 exec, s[40:41]")
    a("v_lshrrev_b32 v6, 5, v1"); a("v_lshl_add_u32 v6, v6, 4, s37")
    a("s_waitcnt lgkmcnt(0)")
    for q in range(3): a(f"ds_read_b128 v[{QCS+4*q}:{QCS+4*q+3}], v6 offset:{q*32}")
    a("s_waitcnt lgkmcnt(0)")
    a("s_barrier")

def q_stats_load(a):
    a(f"s_add_u32 s4, s{P_WS}, {WS_STAT}"); a(f"s_addc_u32 s5, s{P_WS+1}, 0"); a(f"s_mov_b32 s6, {S*8}"); a("s_mov_b32 s7, 0x20000")
    a(f"s_lshl_b32 s38, s{S_RB}, 9"); a("v_and_b32 v5, 31, v1"); a("v_lshlrev_b32 v5, 3, v5"); a("v_add_u32 v5, s38, v5")
    a("buffer_load_dwordx2 v[96:97], v5, s[4:7], 0 offen"+SC)
    a("buffer_load_dwordx2 v[98:99], v5, s[4:7], 0 offen offset:256"+SC)

def q_finalize(a):
    a("v_cmp_gt_u32 s[46:47], 32, v1")
    a(f"s_and_b32 s38, s{S_W}, 1")
    a(f"s_mov_b32 s59, {f2u(QSCALE)}")
    for mt in range(2):
        A=QAC[mt]; Q0=(QA0,QB0)[mt]; Q2=(QA2,QB2)[mt]; M=96+2*mt; R=97+2*mt
        a(f"v_mul_f32 v{R}, s59, v{R}")
        for r in range(12):
            a(f"v_fma_f32 v{A+r}, -v{M}, v{QCS+r}, v{A+r}")
        for r in range(12):
            a(f"v_mul_f32 v{A+r}, v{R}, v{A+r}")
        for p in range(6): a(f"v_cvt_pk_bf16_f32 v{100+p}, v{A+2*p}, v{A+2*p+1}")
        Lo=a.newlabel("QODD"); Le=a.newlabel("QEND")
        a("s_cmp_lg_u32 s38, 0"); a(f"s_cbranch_scc1 {Lo}")
        for p in range(4): a(f"v_mov_b32 v{Q0+p}, v{100+p}")
        a(f"v_cndmask_b32 v{Q2}, 0, v104, s[46:47]")
        a(f"s_branch {Le}")
        a.label(Lo)
        a(f"v_mov_b32 v{Q0}, v101"); a(f"v_mov_b32 v{Q0+2}, v103")
        a("v_mov_b32 v106, v102")
        a("v_permlane32_swap_b32 v100, v102")
        a(f"v_cndmask_b32 v{Q0+1}, v100, v102, s[46:47]")
        a("v_permlane32_swap_b32 v106, v104")
        a(f"v_cndmask_b32 v{Q0+3}, v106, v104, s[46:47]")
        a(f"v_cndmask_b32 v{Q2}, 0, v105, s[46:47]")
        a.label(Le)
        a(f"v_mov_b32 v{Q2+1}, 0")
    if DBG:
        mk_srd(a,4,P_WS,256*4*4096,WS_END+0x100000)
        a(f"s_lshl_b32 s38, s{S_RB}, 3"); a(f"s_add_u32 s38, s38, s{S_J}"); a("s_lshl_b32 s38, s38, 2"); a(f"s_add_u32 s38, s38, s{S_W}"); a("s_lshl_b32 s38, s38, 12")
        a("v_lshlrev_b32 v5, 2, v1"); a("v_add_u32 v5, s38, v5")
        for i,r in enumerate(list(range(QA0,QA0+5))+list(range(QB0,QB0+5))):
            a(f"buffer_store_dword v{r}, v5, s[4:7], 0 offen offset:{i*256}")
```

```python
from asmlib import *
import os, struct
S=2048; D=576; H=32; DH=18; F=4608
ROWB=D*2
MAT=S*ROWB
P_X,P_WQ,P_WK,P_WV,P_WO,P_BX,P_WG,P_WU,P_WD,P_OUT,P_DBG,P_WS=[64+2*i for i in range(12)]
S_RB,S_J,S_W,S_TAG=60,61,62,63
WS_FLAGS=0
FL_E=0
FL_KV=0x1000
FL_WO=0x3000
FL_G=0x4000
FL_PK=0x10000
FL_BYTES=0x14000
WS_Q=0x14000
WS_KV=WS_Q+MAT
KV_STAGE=37888; KV_K2=16384; KV_V=18432; KV_BYTES=4*KV_STAGE
WS_NORM=WS_KV+0x28000
WS_STAT=WS_NORM+0x1000
WS_O=WS_STAT+0x4000
WS_H=WS_O+MAT
WS_HC=WS_H+MAT
WS_RS=WS_HC+MAT
WS_SSQ=WS_RS+0x8000
WS_WO=WS_SSQ+S*64
WO_BYTES=6*2*18*3*1024
WS_W=WS_WO+WO_BYTES
WSTREAM=486*1024
WS_PART=WS_W+32*WSTREAM
WS_END=WS_PART+8*MAT
QSCALE=(DH**-0.5)*1.4426950408889634
EPS=1e-5
SC=" sc1"
PROF=os.environ.get("PROF")
DBG=os.environ.get("DBG")
WS_PROF=WS_END+0x10000

def f2u(x): return struct.unpack("<I",struct.pack("<f",x))[0]

def mk_srd(a, srd, ptr, nbytes, off=0):
    if off:
        a(f"s_add_u32 s{srd}, s{ptr}, {off}")
        a(f"s_addc_u32 s{srd+1}, s{ptr+1}, 0")
    else:
        a(f"s_mov_b32 s{srd}, s{ptr}")
        a(f"s_mov_b32 s{srd+1}, s{ptr+1}")
    a(f"s_mov_b32 s{srd+2}, {nbytes}")
    a(f"s_mov_b32 s{srd+3}, 0x20000")

def xop16(a, op, v, t):
    a(f"v_mov_b32 v{t}, v{v}"); a(f"v_permlane16_swap_b32 v{v}, v{t}"); a(f"{op} v{v}, v{v}, v{t}")
def xop32(a, op, v, t):
    a(f"v_mov_b32 v{t}, v{v}"); a(f"v_permlane32_swap_b32 v{v}, v{t}"); a(f"{op} v{v}, v{v}, v{t}")
def xsum16(a,v,t): xop16(a,"v_add_f32",v,t)
def xsum32(a,v,t): xop32(a,"v_add_f32",v,t)
def xmax16(a,v,t): xop16(a,"v_max_f32",v,t)
def xmax32(a,v,t): xop32(a,"v_max_f32",v,t)

NSTAMP=14
XS=os.environ.get("XS","")
_xs=[1]
def xstamp(a, grp):
    if not PROF or XS!=grp: return
    i=_xs[0]
    while i in (9,12,13): i+=1
    if i>=NSTAMP-1: return
    _xs[0]=i+1
    stamp(a,i,True)
def stamp(a, i, force=False):
    if not PROF: return
    if XS and not force and i not in (0,13): return
    assert i<NSTAMP
    a("s_memrealtime s[4:5]" if os.environ.get("RT") else "s_memtime s[4:5]")
    a("s_waitcnt lgkmcnt(0)")
    a(f"s_mov_b32 s{88+i}, s4")
def stamp_rt(a, i):
    if not PROF: return
    a("s_memrealtime s[4:5]")
    a("s_waitcnt lgkmcnt(0)")
    a(f"s_mov_b32 s{88+i}, s4")
def stamp_flush(a):
    if not PROF: return
    mk_srd(a,28,P_WS,262144,WS_PROF)
    a("v_lshrrev_b32 v1, 6, v0")
    a("s_lshl_b32 s4, s2, 2")
    a("v_add_u32 v1, s4, v1")
    a("v_lshlrev_b32 v1, 6, v1")
    for i in range(NSTAMP):
        a(f"v_mov_b32 v2, s{88+i}")
        a(f"buffer_store_dword v2, v1, s[28:31], 0 offen offset:{4*i}")

def flag_srd(a): mk_srd(a,28,P_WS,FL_BYTES,WS_FLAGS)

def flag_store(a, addr_s):
    L=a.newlabel("SIG")
    vm0=a.vm
    a(f"s_cmp_lg_u32 s{S_W}, 0")
    a(f"s_cbranch_scc1 {L}")
    flag_srd(a)
    a(f"v_mov_b32 v250, s{addr_s}")
    a(f"v_mov_b32 v251, s{S_TAG}")
    a("s_mov_b64 exec, 1")
    a("buffer_store_dword v251, v250, s[28:31], 0 offen sc1")
    a("s_mov_b64 exec, -1")
    a.label(L)
    a.vm=vm0

def signal(a, addr_s, vm=0):
    a(f"s_waitcnt vmcnt({vm}) lgkmcnt(0)")
    a("s_barrier")
    flag_store(a, addr_s)

def poll(a, vaddrs, barrier=True, sleep=1):
    L=a.newlabel("POL"); E=a.newlabel("POLE")
    vm0=a.vm
    a(f"s_cmp_lg_u32 s{S_W}, 0")
    a(f"s_cbranch_scc1 {E}")
    flag_srd(a)
    a("s_mov_b32 s3, 0")
    a.label(L)
    for i,v in enumerate(vaddrs):
        a(f"buffer_load_dword v{244+i}, v{v}, s[28:31], 0 offen sc1")
    a("s_waitcnt vmcnt(0)")
    a(f"v_xor_b32 v244, s{S_TAG}, v244")
    for i in range(1,len(vaddrs)):
        a(f"v_xor_b32 v{244+i}, s{S_TAG}, v{244+i}")
        a(f"v_or_b32 v244, v244, v{244+i}")
    a("v_cmp_ne_u32 vcc, 0, v244")
    a("s_add_u32 s3, s3, 1")
    a("s_cmp_gt_u32 s3, 0x40000")
    a(f"s_cbranch_scc1 {E}")
    a(f"s_cbranch_vccnz {L}")
    a.label(E)
    if barrier: a("s_barrier")
    a.vm=vm0

def gflag_addr(a, dst, base):
    a(f"s_lshl_b32 s{dst}, s{S_RB}, 3")
    a(f"s_add_u32 s{dst}, s{dst}, s{S_J}")
    a(f"s_lshl_b32 s{dst}, s{dst}, 6")
    a(f"s_add_u32 s{dst}, s{dst}, {base}")
def gpoll_addr(a, v, base, n):
    a(f"v_and_b32 v{v}, 7, v0")
    if n<8: a(f"v_min_u32 v{v}, {n-1}, v{v}")
    a(f"s_lshl_b32 s3, s{S_RB}, 3")
    a(f"v_add_u32 v{v}, s3, v{v}")
    a(f"v_lshlrev_b32 v{v}, 6, v{v}")
    a(f"v_add_u32 v{v}, {base}, v{v}")
```

```python
import sys
from ncommon import *
from n_p1 import *
from n_attn import *
from n_ffn import *
NAME="sequential_preLN__grouped_kv_mqa__glu_gated_bilinear__prompt"
HEADER=open("cdna_kernels/"+NAME+".s.ref").read().split("; Override launch")[0]
LDS=163840

def mega():
    a=Asm()
    a("s_cmp_ge_u32 s2, 256")
    a("s_cbranch_scc1 MEGA_END")
    a("s_load_dwordx16 s[64:79], s[0:1], 0")
    a("s_load_dwordx8 s[80:87], s[0:1], 64")
    a("v_lshrrev_b32 v2, 6, v0")
    a(f"v_readfirstlane_b32 s{S_W}, v2")
    MAP=os.environ.get("MAP","8")
    a("s_and_b32 s3, s2, 7")
    a("s_lshr_b32 s6, s2, 3")
    if MAP=="8":
        a("s_lshr_b32 s4, s3, 1"); a("s_and_b32 s5, s3, 1"); a("s_and_b32 s7, s6, 7"); a("s_lshl_b32 s4, s4, 3"); a(f"s_add_u32 s{S_RB}, s4, s7")
        a("s_lshr_b32 s6, s6, 3"); a("s_lshl_b32 s5, s5, 2"); a(f"s_add_u32 s{S_J}, s5, s6")
    elif MAP=="16":
        a("s_lshr_b32 s4, s3, 2"); a("s_and_b32 s5, s3, 3"); a("s_and_b32 s7, s6, 15"); a("s_lshl_b32 s4, s4, 4"); a(f"s_add_u32 s{S_RB}, s4, s7")
        a("s_lshr_b32 s6, s6, 4"); a("s_lshl_b32 s5, s5, 1"); a(f"s_add_u32 s{S_J}, s5, s6")
    elif MAP=="32":
        a(f"s_mov_b32 s{S_RB}, s6"); a(f"s_mov_b32 s{S_J}, s3")
    elif MAP=="4":
        a("s_lshl_b32 s4, s3, 2"); a("s_and_b32 s7, s6, 3"); a(f"s_add_u32 s{S_RB}, s4, s7"); a(f"s_lshr_b32 s{S_J}, s6, 2")
    a("v_and_b32 v1, 63, v0")
    if os.environ.get("CPF","1")=="1":
        a("s_getpc_b64 s[8:9]")
        a.label("PCREF")
        a("s_lshr_b32 s10, s2, 3"); a("s_lshl_b32 s10, s10, 2"); a(f"s_add_u32 s10, s10, s{S_W}"); a("s_lshl_b32 s10, s10, 10")
        a("v_lshl_add_u32 v250, v1, 4, s10")
        a("v_min_u32 v250, MEGA_END-PCREF-16, v250")
        a("v_mov_b32 v251, s9")
        a("v_add_co_u32 v250, vcc, s8, v250")
        a("v_addc_co_u32 v251, vcc, 0, v251, vcc")
        a("global_load_dwordx4 v[252:255], v[250:251], off")
    a("s_waitcnt lgkmcnt(0)")
    a(f"s_load_dword s{S_TAG}, s[{P_WS}:{P_WS+1}], {WS_FLAGS+FL_E}")
    stamp(a,0); stamp_rt(a,12)
    wo_load(a)
    xstamp(a,"i")
    x_dma(a)
    xstamp(a,"i")
    a(f"s_cmp_lt_u32 s{S_J}, 6"); a("s_cbranch_scc1 P1_NOKVD")
    wkv_dma(a)
    a.label("P1_NOKVD")
    wq_addr(a)
    ones_init(a)
    a(f"s_cmp_ge_u32 s{S_J}, 6"); a("s_cbranch_scc1 P1_PROD")
    xstamp(a,"i")
    wq_dma(a,0,4)
    xstamp(a,"i")
    pack_setup(a)
    a("s_waitcnt lgkmcnt(0)")
    a(f"s_mul_i32 s{S_TAG}, s{S_TAG}, 0x9e3779b1"); a(f"s_add_u32 s{S_TAG}, s{S_TAG}, 0x7f4a7c15")
    a("s_waitcnt vmcnt(6)")
    xstamp(a,"i")
    a("s_barrier")
    a("s_branch P1_Q")
    a.label("P1_PROD")
    kv_setup(a)
    pack_setup(a)
    a("s_waitcnt lgkmcnt(0)")
    a(f"s_mul_i32 s{S_TAG}, s{S_TAG}, 0x9e3779b1"); a(f"s_add_u32 s{S_TAG}, s{S_TAG}, 0x7f4a7c15")
    xstamp(a,'k')
    a("s_waitcnt vmcnt(0)")
    xstamp(a,'k')
    a("s_barrier")
    xstamp(a,'k')
    a(f"s_cmp_eq_u32 s{S_J}, 7"); a("s_cbranch_scc1 P1_V")
    kv_compute(a,True)
    a("s_branch P1_KVD")
    a.label("P1_V")
    kv_compute(a,False)
    a.label("P1_KVD")
    xstamp(a,'k')
    a("s_waitcnt vmcnt(7) lgkmcnt(0)")
    a("s_barrier")
    a.label("P1_Q")
    stamp(a,1)
    def mid_signal():
        L=a.newlabel("MS"); vm0=a.vm
        a(f"s_cmp_lt_u32 s{S_J}, 6"); a(f"s_cbranch_scc1 {L}")
        a(f"s_lshl_b32 s6, s{S_RB}, 1"); a(f"s_add_u32 s6, s6, s{S_J}"); a("s_sub_u32 s6, s6, 6"); a("s_lshl_b32 s6, s6, 7"); a(f"s_add_u32 s6, s6, {FL_KV}")
        flag_store(a,6)
        stamp(a,8)
        a.label(L); a.vm=vm0
    q_proj(a,mid_signal)
    stamp(a,2)
    wo_store(a)
    L=a.newlabel("WOF")
    wo_task_cond(a,L)
    a(f"s_lshl_b32 s6, s{S_RB}, 6"); a(f"s_add_u32 s6, s6, {FL_WO}")
    signal(a,6)
    a.label(L)
    attn_init(a)
    a("v_lshlrev_b32 v9, 7, v1"); a(f"v_add_u32 v9, {FL_KV}, v9")
    poll(a,[9])
    stamp(a,3)
    st={}
    xstamp(a,'a')
    attn_issue(a,st,q_stats_load)
    xstamp(a,'a')
    def b3_pre():
        Lok=a.newlabel("WOK"); Lp=a.newlabel("WOP"); vm0=a.vm
        a("s_mov_b32 s3, 0")
        a.label(Lp)
        a(f"v_cmp_ne_u32 vcc, s{S_TAG}, v{WOFLAG}")
        a(f"s_cbranch_vccz {Lok}")
        a(f"buffer_load_dword v{WOFLAG}, v{WOFLAG+1}, s[28:31], 0 offen sc1")
        a("s_waitcnt vmcnt(0)")
        a("s_add_u32 s3, s3, 1"); a("s_cmp_lt_u32 s3, 0x40000"); a(f"s_cbranch_scc1 {Lp}")
        a.label(Lok); a.vm=vm0
        wo_frag_setup(a)
    attn_main(a,st,pack_b0_groups(st),pack_mid_groups(),wo_frag_groups(a),b3_pre,q_finalize)
    stamp(a,4)
    xstamp(a,'h')
    attn_epilogue(a)
    xstamp(a,'h')
    gflag_addr(a,6,FL_G)
    signal(a,6)
    xstamp(a,'h')
    a(f"s_cmp_ge_u32 s{S_J}, 6")
    a("s_cbranch_scc1 P3_SKIP")
    p3_xres(a)
    gpoll_addr(a,2,FL_G,8)
    poll(a,[2])
    xstamp(a,'h')
    stamp(a,5)
    p3(a,lambda: xstamp(a,'h'))
    xstamp(a,'h')
    gflag_addr(a,6,FL_G+0x4000)
    signal(a,6)
    xstamp(a,'h')
    a("s_branch P3_DONE")
    a.label("P3_SKIP")
    pack_third(a)
    gflag_addr(a,6,FL_PK)
    signal(a,6)
    stamp(a,5)
    a.label("P3_DONE")
    ffn=FFN(a)
    gpoll_addr(a,11,FL_G+0x4000,6)
    for i in range(4):
        a(f"v_and_b32 v{12+i}, 63, v0")
        a(f"v_add_u32 v{12+i}, {64*i}, v{12+i}"); a(f"v_lshlrev_b32 v{12+i}, 6, v{12+i}"); a(f"v_add_u32 v{12+i}, {FL_G}, v{12+i}")
    a("v_and_b32 v16, 63, v0"); a("v_lshrrev_b32 v17, 1, v16"); a("v_lshlrev_b32 v17, 3, v17"); a("v_and_b32 v16, 1, v16"); a("v_add_u32 v16, v16, v17")
    a("v_add_u32 v16, 6, v16"); a("v_lshlrev_b32 v16, 6, v16"); a(f"v_add_u32 v16, {FL_PK}, v16")
    poll(a,[11,12,13,14,15,16])
    xstamp(a,'h')
    stamp(a,6)
    ffn.ring_setup()
    ffn.ln()
    stamp(a,7)
    ffn.main()
    stamp(a,10)
    xstamp(a,'r')
    gflag_addr(a,6,FL_G+0x8000)
    signal(a,6)
    xstamp(a,'r')
    reduce_setup(a)
    reduce_h(a)
    htok=a.vtok()
    gpoll_addr(a,36,FL_G+0x8000,8)
    poll(a,[36])
    stamp(a,11)
    xstamp(a,'r')
    reduce_phase(a,htok)
    a(f"s_or_b32 s3, s{S_RB}, s{S_J}"); a(f"s_or_b32 s3, s3, s{S_W}")
    a("s_cmp_lg_u32 s3, 0")
    a("s_cbranch_scc1 MEGA_FIN")
    a(f"s_load_dword s4, s[{P_WS}:{P_WS+1}], {WS_FLAGS+FL_E}")
    a("s_waitcnt lgkmcnt(0)")
    a("s_add_u32 s4, s4, 1")
    flag_srd(a)
    a("v_mov_b32 v250, 0"); a("v_mov_b32 v251, s4")
    a("s_mov_b64 exec, 1")
    a("buffer_store_dword v251, v250, s[28:31], 0 offen sc1")
    a("s_mov_b64 exec, -1")
    a.label("MEGA_FIN")
    if PROF:
        a("s_waitcnt vmcnt(0)")
        stamp(a,13)
        stamp_rt(a,9)
        stamp_flush(a)
    a.label("MEGA_END")
    a("s_endpgm")
    return a

if __name__=="__main__":
    s=HEADER+f"; @launch grid=(256,1,1) block=(256,1,1) lds={LDS}\n"
    s+='.amdgcn_target "amdgcn-amd-amdhsa--gfx950"\n'
    s+=kernel_text(NAME+"_kernel",mega(),512,256)
    out=sys.argv[1] if len(sys.argv)>1 else "cdna_kernels/"+NAME+".s"
    open(out,"w").write(s)
    print("written",out,len(s))
```

```python
from ncommon import *
from n_p1 import pack_perm
T_BASE=73728
RING=54
PRE=int(os.environ.get('PRE','42'))
TAIL=int(os.environ.get('TAIL','14'))
PREA=int(os.environ.get('PREA','16'))
HSY=eval(os.environ.get('HSY','(3,9)'))

def wgu_decode(a, T):
    a(f"s_mul_hi_u32 s42, s{T}, 0x71c71c8")
    a("s_mul_i32 s41, s42, 36"); a(f"s_sub_u32 s41, s{T}, s41")
    a("s_cmp_ge_u32 s42, 18"); a("s_cselect_b32 s43, 1, 0")
    a("s_mul_i32 s45, s43, 18"); a("s_sub_u32 s42, s42, s45")

def wgu_setup(a, T, srd, vreg):
    wgu_decode(a,T)
    a("s_cmp_eq_u32 s43, 0")
    a(f"s_cselect_b32 s{srd}, s{P_WG}, s{P_WU}"); a(f"s_cselect_b32 s{srd+1}, s{P_WG+1}, s{P_WU+1}")
    a(f"s_mov_b32 s{srd+2}, {D*F*2}"); a(f"s_mov_b32 s{srd+3}, 0x20000")
    a("s_mul_hi_u32 s45, s42, 0x55555556"); a("s_mul_i32 s46, s45, 3"); a("s_sub_u32 s46, s42, s46")
    a("s_mul_i32 s45, s45, 96"); a("s_lshl_b32 s46, s46, 1"); a("s_add_u32 s45, s45, s46")
    a(f"s_mul_i32 s45, s45, {F*2}"); a("s_lshl_b32 s46, s41, 8"); a("s_add_u32 s45, s45, s46")
    a("v_and_b32 v244, 63, v0")
    a("v_bfe_u32 v245, v244, 4, 1"); a("v_mul_u32_u24 v245, 48, v245"); a("v_lshrrev_b32 v246, 5, v244"); a("v_add_u32 v245, v245, v246")
    a(f"v_mul_u32_u24 v245, {F*2}, v245")
    a("v_and_b32 v246, 15, v244"); a("v_lshl_add_u32 v245, v246, 4, v245")
    a(f"v_add_u32 v{vreg}, s45, v245")

def wgu_sdesc(a, base, vs):
    a("s_mul_hi_u32 s45, s41, 0x1c71c71d"); a("s_mul_i32 s46, s45, 9"); a("s_sub_u32 s46, s41, s46")
    a(f"s_mul_i32 s45, s45, {8*WSTREAM}")
    a("s_mul_hi_u32 s47, s46, 0x55555556"); a("s_mul_i32 s48, s47, 3"); a("s_sub_u32 s48, s46, s48")
    a("s_mul_i32 s47, s47, 18"); a("s_add_u32 s47, s47, s42"); a("s_mul_i32 s47, s47, 3"); a("s_add_u32 s47, s47, s48")
    a("s_lshl_b32 s47, s47, 1"); a("s_add_u32 s47, s47, s43"); a("s_lshl_b32 s47, s47, 10")
    a(f"s_add_u32 s{base[0]}, s45, s47")
    for k in range(1,4): a(f"s_mov_b32 s{base[k]}, {WSTREAM}")
    a("v_and_b32 v244, 63, v0"); a(f"v_lshlrev_b32 v{vs}, 4, v244")

def wd_decode(a, T):
    a(f"s_mul_hi_u32 s41, s{T}, 0x2aaaaaab")
    a("s_mul_i32 s42, s41, 6"); a(f"s_sub_u32 s42, s{T}, s42")
    a("s_mul_hi_u32 s43, s41, 0xe38e38f")
    a("s_mul_i32 s44, s43, 18"); a("s_sub_u32 s44, s41, s44")

def wd_setup(a, T, srd, vreg):
    wd_decode(a,T)
    mk_srd(a,srd,P_WD,F*D*2)
    a("s_lshr_b32 s49, s43, 1"); a("s_mul_i32 s49, s49, 9")
    for h,dst in ((0,46),(1,48)):
        a("s_lshl_b32 s45, s44, 1")
        if h: a("s_add_u32 s45, s45, 1")
        a("s_mul_hi_u32 s47, s45, 0x1c71c71d")
        a(f"s_mul_i32 s{dst}, s47, 9"); a(f"s_sub_u32 s{dst}, s45, s{dst}")
        a(f"s_add_u32 s{dst}, s{dst}, s49"); a(f"s_lshl_b32 s{dst}, s{dst}, 7"); a(f"s_add_u32 s{dst}, s{dst}, s47")
    a("s_and_b32 s49, s43, 1"); a("s_lshl_b32 s49, s49, 2"); a("s_add_u32 s46, s46, s49"); a("s_add_u32 s48, s48, s49")
    a("v_and_b32 v244, 63, v0"); a("v_and_b32 v245, 15, v244"); a("v_lshrrev_b32 v246, 4, v244")
    a("v_mov_b32 v247, s46"); a("v_mov_b32 v248, s48")
    a("v_cmp_le_u32 vcc, 2, v246"); a("v_cndmask_b32 v247, v247, v248, vcc")
    a("v_and_b32 v248, 1, v246"); a("v_lshl_add_u32 v247, v248, 6, v247")
    a(f"v_mul_u32_u24 v247, {ROWB}, v247"); a("v_mul_u32_u24 v248, 12, v245"); a("v_add_u32 v247, v247, v248")
    a("s_mul_i32 s49, s42, 192"); a(f"v_add_u32 v{vreg}, s49, v247")

def wd_soff(a, dst):
    a("s_lshl_b32 s45, s43, 2"); a("s_and_b32 s46, s42, 1"); a("s_lshl_b32 s46, s46, 1"); a("s_add_u32 s45, s45, s46"); a(f"s_mul_i32 s45, s45, {WSTREAM}")
    a("s_lshr_b32 s46, s42, 1"); a("s_mul_i32 s46, s46, 18"); a("s_add_u32 s46, s46, s44"); a("s_mul_i32 s46, s46, 3072")
    a("s_add_u32 s45, s45, s46"); a(f"s_add_u32 s{dst}, s45, {324*1024}")
def wd_sdesc(a, base, vs):
    wd_soff(a,base[0])
    a(f"s_movk_i32 s{base[1]}, 1024")
    a(f"s_mov_b32 s{base[2]}, {WSTREAM-2048}")
    a(f"s_mov_b32 s{base[3]}, 0x40000000")
    a("v_and_b32 v244, 63, v0"); a(f"v_lshlrev_b32 v{vs}, 4, v244")

PK_RAW=180; PK_RAWB=212
PK_VL1=30; PK_VL2=31
PK_VS1=22; PK_VS2=23
PK_OB=[244,248,252]
SD1=(33,34,35,36); SD2=(52,53,54,55)
def pack_setup(a):
    a(f"s_lshl_b32 s5, s{S_RB}, 3"); a(f"s_add_u32 s5, s5, s{S_J}"); a("s_lshl_b32 s5, s5, 2"); a(f"s_add_u32 s5, s5, s{S_W}")
    wgu_setup(a,5,68,PK_VL1)
    wgu_sdesc(a,SD1,PK_VS1)
    LW=a.newlabel("PKW"); LE=a.newlabel("PKE")
    a("s_cmp_ge_u32 s5, 272"); a(f"s_cbranch_scc1 {LW}")
    a("s_add_u32 s5, s5, 1024")
    wgu_setup(a,5,72,PK_VL2)
    wgu_sdesc(a,SD2,PK_VS2)
    a(f"s_mov_b32 s66, {6*F*2}")
    a(f"s_branch {LE}")
    a.label(LW)
    a("s_sub_u32 s5, s5, 272")
    wd_setup(a,5,72,PK_VL2)
    wd_sdesc(a,SD2,PK_VS2)
    a(f"s_mov_b32 s66, {8*ROWB}")
    a.label(LE)
def pack_b0_groups(st):
    g=[[f"s_add_u32 s48, s{P_WS}, {WS_W}", f"s_addc_u32 s49, s{P_WS+1}, 0", f"s_mov_b32 s50, {32*WSTREAM}", "s_mov_b32 s51, 0x20000",
        "s_mov_b32 s42, 0x05040100","s_mov_b32 s43, 0x07060302","s_mov_b32 s56, 0","s_mov_b32 s57, 0"]]
    for i in range(8):
        g.append([f"buffer_load_dwordx4 v[{PK_RAW+4*i}:{PK_RAW+4*i+3}], v{PK_VL1}, s[68:71], s56 offen"]+([f"s_add_u32 s56, s56, {6*F*2}"] if i<7 else []))
    def tk(a): st['pk1']=a.vtok()
    g[-1].append(tk)
    for i in range(8):
        g.append([f"buffer_load_dwordx4 v[{PK_RAWB+4*i}:{PK_RAWB+4*i+3}], v{PK_VL2}, s[72:75], s57 offen"]+(["s_add_u32 s57, s57, s66"] if i<7 else []))
    def tk2(a): st['pk2']=a.vtok()
    g[-1].append(tk2)
    return g
def pack_mid_groups():
    st=[]
    for e in range(8):
        ob=PK_OB[e%3]
        for half in range(2):
            ins=[]
            for r in (2*half,2*half+1):
                sel="s42" if (e&1)==0 else "s43"
                ins.append(f"v_perm_b32 v{ob+r}, v{PK_RAW+4*(2*r+1)+(e>>1)}, v{PK_RAW+4*(2*r)+(e>>1)}, {sel}")
            if half==1:
                ins.append(f"buffer_store_dwordx4 v[{ob}:{ob+3}], v{PK_VS1}, s[48:51], s33 offen"+SC)
                if e<7:
                    d={2:35,5:36}.get(e,34)
                    ins.append(f"s_add_u32 s33, s33, s{d}")
            st.append(ins)
    cp=[]
    mv=[f"v_mov_b32 v{PK_RAW+i}, v{PK_RAWB+i}" for i in range(32)]
    for k in range(11): cp.append(mv[3*k:3*k+3])
    cp.append(["s_mov_b32 s33, s52","s_mov_b32 s34, s53","s_mov_b32 s35, s54","s_mov_b32 s36, s55",f"v_mov_b32 v{PK_VS1}, v{PK_VS2}"])
    return st,cp

def pack_third(a, ob=64):
    L=a.newlabel("PK3")
    vm0=a.vm
    a(f"s_lshl_b32 s34, s{S_RB}, 1"); a(f"s_add_u32 s34, s34, s{S_J}"); a("s_sub_u32 s34, s34, 6"); a("s_lshl_b32 s34, s34, 2"); a(f"s_add_u32 s34, s34, s{S_W}")
    a("s_cmp_ge_u32 s34, 112"); a(f"s_cbranch_scc1 {L}")
    a("s_add_u32 s34, s34, 752")
    mk_srd(a,24,P_WS,32*WSTREAM,WS_W)
    wd_setup(a,34,16,PK_VL2)
    for i in range(8):
        a(f"s_mov_b32 s20, {8*i*ROWB}")
        a(f"buffer_load_dwordx4 v[{PK_RAW+4*i}:{PK_RAW+4*i+3}], v{PK_VL2}, s[16:19], s20 offen")
    wd_soff(a,21)
    a(f"s_add_u32 s22, s21, {WSTREAM}")
    a("v_and_b32 v244, 63, v0"); a("v_lshlrev_b32 v245, 4, v244")
    a("s_waitcnt vmcnt(0)")
    pack_perm(a,6,PK_RAW,ob)
    for e in range(6):
        a(f"buffer_store_dwordx4 v[{ob+4*e}:{ob+4*e+3}], v245, s[24:27], s{21+e//3} offen offset:{(e%3)*1024}"+SC)
    a.label(L)
    a.vm=vm0

def wo_frag_groups(a):
    g=[]
    for n in range(54):
        ins=[f"buffer_load_dwordx4 a[{4*n}:{4*n+3}], v8, s[12:15], s36 offen offset:{(n%4)*1024}"+SC]
        if n%4==3: ins.append("s_add_u32 s36, s36, 4096")
        g.append(ins)
    return g
def wo_frag_setup(a):
    mk_srd(a,12,P_WS,WO_BYTES,WS_WO)
    a(f"s_lshr_b32 s36, s{S_J}, 1"); a("s_min_u32 s36, s36, 2"); a("s_lshl_b32 s36, s36, 2"); a(f"s_add_u32 s36, s36, s{S_W}")
    a(f"s_mul_i32 s36, s36, {54*1024}")

XR=144
RSF=168
MX=240
def p3_pre(a):
    mk_srd(a,12,P_X,MAT)
    a("v_and_b32 v1, 63, v0"); a("v_and_b32 v3, 15, v1"); a("v_lshrrev_b32 v4, 4, v1")
    a(f"s_and_b32 s35, s{S_J}, 1"); a("s_lshl_b32 s35, s35, 5"); a(f"s_lshl_b32 s36, s{S_RB}, 6"); a("s_add_u32 s35, s35, s36")
    a(f"s_lshr_b32 s36, s{S_J}, 1"); a("s_lshl_b32 s36, s36, 1"); a(f"s_lshr_b32 s37, s{S_W}, 1"); a("s_add_u32 s36, s36, s37")
    a("v_add_u32 v5, s35, v3"); a(f"s_movk_i32 s37, {ROWB}")
    a("v_mul_u32_u24 v6, 48, v4"); a("s_mul_i32 s38, s36, 192"); a("v_add_u32 v6, s38, v6")
    a("v_mad_u32_u24 v6, v5, s37, v6")
    a(f"s_movk_i32 s38, {16*ROWB}")
    for mt in range(2):
        for i in range(3):
            q=XR+12*mt+4*i
            a(f"buffer_load_dwordx4 v[{q}:{q+3}], v6, s[12:15], {'s38' if mt else '0'} offen offset:{16*i}")
    mk_srd(a,16,P_WS,S*8,WS_STAT)
    a("v_lshlrev_b32 v7, 3, v5")
    a(f"buffer_load_dwordx2 v[{MX}:{MX+1}], v7, s[16:19], 0 offen"+SC)
    a(f"buffer_load_dwordx2 v[{MX+2}:{MX+3}], v7, s[16:19], 0 offen offset:128"+SC)
    mk_srd(a,20,P_WS,18*1024,WS_RS)
    a("v_lshlrev_b32 v2, 4, v1")
    for ks in range(18):
        if ks%4==0: a(f"s_movk_i32 s38, {ks*1024}")
        a(f"buffer_load_dwordx4 v[{RSF+4*ks}:{RSF+4*ks+3}], v2, s[20:23], s38 offen offset:{(ks%4)*1024}"+SC)

NLOOP=int(os.environ.get('NLOOP','30'))
def p3(a, ffn):
    mk_srd(a,8,P_WS,MAT,WS_O)
    a(f"s_mul_i32 s35, s{S_RB}, 73728"); a(f"s_and_b32 s36, s{S_J}, 1"); a("s_mul_i32 s36, s36, 36864"); a("s_add_u32 s35, s35, s36")
    a(f"s_and_b32 s37, s{S_W}, 1"); a("s_mul_i32 s37, s37, 18432"); a(f"s_lshr_b32 s38, s{S_W}, 1"); a("s_lshl_b32 s38, s38, 10"); a("s_add_u32 s37, s37, s38")
    a("s_add_u32 s38, s35, s37")
    dt={}
    for i in range(9):
        if i%2==0:
            a("s_mov_b32 m0, s37"); a("s_nop 0")
        a(f"buffer_load_dwordx4 v2, s[8:11], s38 offen offset:{(i%2)*2048}"+SC+" lds")
        if i%2==1: a("s_add_u32 s37, s37, 4096"); a("s_add_u32 s38, s38, 4096")
        dt[i]=a.vtok()
    B2ALL=os.environ.get("B2ALL")
    if not B2ALL:
        flag_srd(a)
        for i in range(4):
            a(f"v_add_u32 v{96+i}, {64*i}, v1"); a(f"v_lshlrev_b32 v{96+i}, 6, v{96+i}"); a(f"v_add_u32 v{96+i}, {FL_G}, v{96+i}")
            a(f"buffer_load_dword v{100+i}, v{96+i}, s[28:31], 0 offen sc1")
        ftok=a.vtok()
    mk_srd(a,24,P_WS,MAT,WS_HC)
    mk_srd(a,16,P_WS,S*64,WS_SSQ)
    a(f"s_lshr_b32 s36, s{S_J}, 1"); a("s_lshl_b32 s36, s36, 1"); a(f"s_lshr_b32 s37, s{S_W}, 1"); a("s_add_u32 s36, s36, s37")
    a("s_mul_i32 s36, s36, 6"); a(f"s_and_b32 s37, s{S_W}, 1"); a("s_mul_i32 s37, s37, 3"); a("s_add_u32 s36, s36, s37")
    for e in range(3):
        a(f"s_add_u32 s37, s36, {e}"); a("s_lshr_b32 s38, s37, 1"); a("s_lshl_b32 s38, s38, 12"); a("s_and_b32 s37, s37, 1"); a("s_lshl_b32 s37, s37, 9"); a(f"s_add_u32 s{56+e}, s37, s38")
    a(f"s_mul_i32 s36, s{S_RB}, 73728"); a(f"s_and_b32 s37, s{S_J}, 1"); a("s_lshl_b32 s37, s37, 11"); a("s_add_u32 s36, s36, s37")
    a("v_lshrrev_b32 v9, 1, v4"); a("v_lshlrev_b32 v9, 8, v9"); a("v_lshl_add_u32 v9, v3, 4, v9"); a("v_and_b32 v6, 1, v4"); a("v_lshl_add_u32 v9, v6, 10, v9")
    a("v_add_u32 v9, s36, v9")
    a("v_lshl_add_u32 v10, v4, 4, v5"); a("v_lshlrev_b32 v10, 6, v10")
    a(f"s_lshr_b32 s37, s{S_J}, 1"); a("s_lshl_b32 s37, s37, 2"); a(f"s_add_u32 s37, s37, s{S_W}")
    a("s_cmp_eq_u32 s37, 0"); a("s_cselect_b32 s38, 48, 0x7f000000"); a("v_add_u32 v8, s38, v10")
    a("s_lshl_b32 s37, s37, 2"); a("v_add_u32 v10, s37, v10")
    a("v_mov_b32 v11, 0x7fffffff"); a("v_cmp_gt_u32 vcc, 2, v4"); a("v_cndmask_b32 v10, v11, v10, vcc"); a("v_cndmask_b32 v8, v11, v8, vcc")
    OF=[[64,68],[72,76],[80,84]]; AC=32; RA=56
    def rd(ks):
        b=ks%3
        return [f"ds_read_b128 v[{OF[b][mt]}:{OF[b][mt]+3}], v2 offset:{mt*18432+ks*1024}" for mt in range(2)]
    ffn.ring_setup()
    a.wait_vm(dt[2]); a("s_barrier")
    xstamp(a,'h')
    tok={}
    for ks in (0,1):
        for x in rd(ks): a(x)
        tok[ks]=a.ltok()
    for ks in range(18):
        b=ks%3
        if ks in (4,10):
            a.wait_vm(dt[5 if ks==4 else 8]); a("s_barrier")
        a.wait_lg(tok[ks])
        nx=rd(ks+2) if ks+2<18 else []
        k=0
        for e in range(3):
            n=ks*3+e
            for mt in range(2):
                d=AC+(e*2+mt)*4; c="0" if ks==0 else f"v[{d}:{d+3}]"
                a(f"v_mfma_f32_16x16x32_bf16 v[{d}:{d+3}], a[{4*n}:{4*n+3}], v[{OF[b][mt]}:{OF[b][mt]+3}], {c}")
                if k<len(nx): a(nx[k])
                elif B2ALL and k in (3,5) and ffn.n<min(NLOOP,3*ks): ffn.issue_w()
                k+=1
        if nx: tok[ks+2]=a.ltok()
        for mt in range(2):
            d=RA+4*mt; c="0" if ks==0 else f"v[{d}:{d+3}]"
            a(f"v_mfma_f32_16x16x32_bf16 v[{d}:{d+3}], v[{RSF+4*ks}:{RSF+4*ks+3}], v[{OF[b][mt]}:{OF[b][mt]+3}], {c}")
    xstamp(a,'h')
    if not B2ALL: a.wait_vm(ftok)
    Lo=a.newlabel("P3O"); Le=a.newlabel("P3E")
    a(f"s_and_b32 s36, s{S_W}, 1"); a("s_cmp_lg_u32 s36, 0"); a(f"s_cbranch_scc1 {Lo}")
    for p in range(2):
        if p==1: a.label(Lo)
        for mt in range(2):
            for e in range(3):
                for r in range(4):
                    idx=6*r+3*p+e; src=XR+12*mt+idx//2; d=AC+(e*2+mt)*4+r; t=88+(r&1)
                    if idx&1: a(f"v_and_b32 v{t}, 0xffff0000, v{src}")
                    else: a(f"v_lshlrev_b32 v{t}, 16, v{src}")
                    a(f"v_add_f32 v{d}, v{d}, v{t}")
        if p==0: a(f"s_branch {Le}")
    a.label(Le)
    for mt in range(2):
        d=RA+4*mt
        a(f"v_add_f32 v{d}, v{d}, v{d+1}"); a(f"v_add_f32 v{d+2}, v{d+2}, v{d+3}"); a(f"v_add_f32 v{d}, v{d}, v{d+2}")
    xsum16(a,RA,88); xsum16(a,RA+4,89); xsum32(a,RA,88); xsum32(a,RA+4,89)
    a(f"s_mov_b32 s36, {f2u(1.0/D)}")
    for mt in range(2): a(f"v_fma_f32 v{RA+4*mt}, v{RA+4*mt}, s36, v{MX+2*mt}")
    for mt in range(2):
        a(f"v_mov_b32 v{RA+4*mt+1}, 0")
    for e in range(3):
        d0=AC+8*e
        for mt in range(2):
            d=d0+4*mt
            for r in range(4): a(f"v_sub_f32 v{d+r}, v{d+r}, v{RA+4*mt}")
        for mt in range(2):
            d=d0+4*mt
            for r in range(4): a(f"v_fma_f32 v{RA+4*mt+1}, v{d+r}, v{d+r}, v{RA+4*mt+1}")
        a(f"v_cvt_pk_bf16_f32 v{d0}, v{d0}, v{d0+1}"); a(f"v_cvt_pk_bf16_f32 v{d0+1}, v{d0+2}, v{d0+3}")
        a(f"v_cvt_pk_bf16_f32 v{d0+2}, v{d0+4}, v{d0+5}"); a(f"v_cvt_pk_bf16_f32 v{d0+3}, v{d0+6}, v{d0+7}")
        a(f"v_permlane16_swap_b32 v{d0}, v{d0+2}"); a(f"v_permlane16_swap_b32 v{d0+1}, v{d0+3}")
        a(f"buffer_store_dwordx4 v[{d0}:{d0+3}], v9, s[24:27], s{56+e} offen"+SC)
    xsum16(a,RA+1,88); xsum16(a,RA+5,89); xsum32(a,RA+1,88); xsum32(a,RA+5,89)
    a("v_cmp_eq_u32 vcc, 1, v4"); a(f"v_cndmask_b32 v88, v{RA+1}, v{RA+5}, vcc"); a(f"v_cndmask_b32 v89, v{RA}, v{RA+4}, vcc")
    a("buffer_store_dword v88, v10, s[16:19], 0 offen"+SC)
    a("buffer_store_dword v89, v8, s[16:19], 0 offen"+SC)
    ffn.stok=a.vtok()
    xstamp(a,'h')
    if not B2ALL:
        Lp=a.newlabel("PKC"); Lq=a.newlabel("PKD"); vm0=a.vm
        a("s_mov_b32 s3, 0")
        a.label(Lp)
        for i in range(4): a(f"v_xor_b32 v{100+i}, s{S_TAG}, v{100+i}")
        a("v_or_b32 v100, v100, v101"); a("v_or_b32 v102, v102, v103"); a("v_or_b32 v100, v100, v102")
        a("v_cmp_ne_u32 vcc, 0, v100")
        a(f"s_cbranch_vccz {Lq}")
        for i in range(4): a(f"buffer_load_dword v{100+i}, v{96+i}, s[28:31], 0 offen sc1")
        a("s_waitcnt vmcnt(0)")
        a("s_add_u32 s3, s3, 1"); a("s_cmp_lt_u32 s3, 0x40000"); a(f"s_cbranch_scc1 {Lp}")
        a.label(Lq); a.vm=vm0
    ffn.prefetch(max(PREA-ffn.n,0))
    return PREA-0

XF=[[16,20,24,28],[32,36,40,44]]
def ACC(set_,f,mt): return 64+set_*96+(f*4+mt)*4
def ACCB(set_,t,j): return 64+set_*48+(t*4+j)*4

FMAP=os.environ.get("FMAP","32")
def ffn_role(a, rb, j):
    if FMAP=="same":
        if rb is not None and rb!=S_RB: a(f"s_mov_b32 s{rb}, s{S_RB}")
        if j!=S_J: a(f"s_mov_b32 s{j}, s{S_J}")
    elif FMAP=="32":
        if rb is not None: a(f"s_lshr_b32 s{rb}, s2, 3")
        a(f"s_and_b32 s{j}, s2, 7")
    elif FMAP=="16":
        if rb is not None:
            a(f"s_bfe_u32 s{rb}, s2, 0x10002"); a(f"s_lshl_b32 s{rb}, s{rb}, 4"); a("s_bfe_u32 s3, s2, 0x40003"); a(f"s_add_u32 s{rb}, s{rb}, s3")
        a(f"s_and_b32 s{j}, s2, 3"); a(f"s_lshl_b32 s{j}, s{j}, 1"); a("s_lshr_b32 s3, s2, 7"); a(f"s_add_u32 s{j}, s{j}, s3")

class FFN:
    def __init__(self,a): self.a=a; self.n=0; self.wtok={}
    def ring_setup(self):
        a=self.a
        mk_srd(a,8,P_WS,32*WSTREAM,WS_W)
        ffn_role(a,None,37)
        a(f"s_lshl_b32 s37, s37, 2"); a(f"s_add_u32 s37, s37, s{S_W}")
        a(f"s_mul_i32 s37, s37, {WSTREAM}")
        a("v_and_b32 v1, 63, v0")
        a("v_lshlrev_b32 v2, 4, v1")
        a("v_add_u32 v7, s37, v2")
        a("s_mov_b32 s40, 0")
    def issue_w(self):
        a=self.a; n=self.n
        if n>=486: return
        if os.environ.get("NOW") and n>=54:
            self.wtok[n]=self.wtok[53]; self.n=n+1; return
        slot=n%RING
        a(f"buffer_load_dwordx4 a[{4*slot}:{4*slot+3}], v7, s[8:11], s40 offen offset:{(n%4)*1024}"+SC)
        self.wtok[n]=a.vtok()
        if n%4==3: a("s_add_u32 s40, s40, 4096")
        self.n=n+1
    def prefetch(self,k):
        for _ in range(k): self.issue_w()
    def issue_paced(self):
        self.slot=getattr(self,'slot',0)+1
        tgt=min(486, PRE+(self.slot*(486-PRE))//(486-TAIL))
        tgt=min(tgt,self.slot+RING)
        while self.n<tgt: self.issue_w()
    def prologue(self):
        a=self.a
        mk_srd(a,12,P_WS,MAT,WS_HC)
        mk_srd(a,16,P_WS,8*MAT,WS_PART)
        a(f"s_mul_i32 s33, s{S_RB}, 73728"); a(f"s_mul_i32 s34, s{S_W}, 18432"); a("s_add_u32 s33, s33, s34")
        self.ht={}
        for i in range(18):
            if i%4==0:
                a("s_mov_b32 m0, s34"); a("s_nop 0")
            a(f"buffer_load_dwordx4 v2, s[12:15], s33 offen offset:{(i%4)*1024}"+SC+" lds")
            if i%4==3: a("s_add_u32 s33, s33, 4096"); a("s_add_u32 s34, s34, 4096")
            self.ht[i]=a.vtok()
        a("v_and_b32 v3, 15, v1"); a("v_lshrrev_b32 v4, 4, v1")
        a("v_lshrrev_b32 v13, 1, v4"); a("v_lshlrev_b32 v13, 8, v13"); a("v_lshl_add_u32 v13, v3, 4, v13"); a("v_and_b32 v14, 1, v4"); a("v_lshl_add_u32 v13, v14, 3, v13")
        for par,reg in ((0,8),(1,9)):
            a(f"s_mul_i32 s38, s{S_W}, 9")
            if par: a("s_add_u32 s38, s38, 1")
            a("s_lshr_b32 s39, s38, 1"); a("s_lshl_b32 s39, s39, 12"); a("s_and_b32 s38, s38, 1"); a("s_lshl_b32 s38, s38, 9"); a("s_add_u32 s38, s38, s39"); a(f"s_add_u32 s38, s38, {T_BASE}")
            a(f"v_add_u32 v{reg}, s38, v13")
        a("v_add_u32 v10, 36864, v2")
        a(f"v_add_u32 v11, {T_BASE}, v2")
        a(f"v_add_u32 v12, {T_BASE+36864}, v2")
        a(f"s_mul_i32 s41, s{S_J}, {MAT}"); a(f"s_mul_i32 s42, s{S_RB}, 73728"); a("s_add_u32 s41, s41, s42")
        a(f"s_mul_i32 s42, s{S_W}, 6144"); a("s_add_u32 s41, s41, s42")
        a("v_add_u32 v13, s41, v2")
    def main(self):
        a=self.a; issue_w=self.issue_w; wtok=self.wtok
        def xl(buf,ks):
            return [f"ds_read_b128 v[{XF[buf][mt]}:{XF[buf][mt]+3}], v{2 if mt<2 else 10} offset:{(mt&1)*18432+ks*1024}" for mt in range(4)]
        def epiA(p):
            g=[]
            for t in range(3):
                c=3*p+t
                for mt in range(4):
                    G=ACC(p&1,2*t,mt); U=ACC(p&1,2*t+1,mt)
                    g.append([f"v_mul_f32 v{G+i}, v{G+i}, v{U+i}" for i in range(4)])
                    g.append([f"v_cvt_pk_bf16_f32 v{G}, v{G}, v{G+1}", f"v_cvt_pk_bf16_f32 v{G+1}, v{G+2}, v{G+3}",
                              f"ds_write_b64 v{8+(c&1)}, v[{G}:{G+1}] offset:{(c>>1)*4096+mt*1024}"])
            return g
        a.wait_vm(self.ht[HSY[0]]); a("s_barrier")
        xstamp(a,'l'); xstamp(a,'h')
        step=0
        for x in xl(0,0): a(x)
        xt=a.ltok()
        pend=[]
        for p in range(3):
            for ks in range(18):
                buf=step&1
                n0=(p*18+ks)*6
                last=(p==2 and ks==17)
                if p==0 and ks==HSY[0]: a.wait_vm(self.ht[HSY[1]]); a("s_barrier")
                if p==0 and ks==HSY[1]: a.wait_vm(self.ht[17]); a("s_barrier")
                a.wait_lg(xt)
                nx=[] if (last or os.environ.get("NOX")) else xl(buf^1,(ks+1)%18)
                k=0
                for f in range(6):
                    slot=(n0+f)%RING
                    if f in (0,3): a.wait_vm(wtok[n0+f+2])
                    for mt in range(4):
                        A=ACC(p&1,f,mt); x=XF[buf][mt]
                        c="0" if ks==0 else f"v[{A}:{A+3}]"
                        a(f"v_mfma_f32_16x16x32_bf16 v[{A}:{A+3}], a[{4*slot}:{4*slot+3}], v[{x}:{x+3}], {c}")
                        k+=1
                        if k in (2,4,6,8) and nx:
                            a(nx[k//2-1])
                            if k==8: xt=a.ltok()
                        if pend and ks>=1 and k in (11,18):
                            for ins in pend.pop(0): a(ins)
                    self.issue_paced()
                step+=1
            pend=epiA(p)
            xstamp(a,'f')
        for grp in pend:
            for ins in grp: a(ins)
        a("s_waitcnt lgkmcnt(0)")
        a("s_barrier")
        def tl(buf,sg):
            base,off=(11,sg*4096) if sg<9 else (12,(sg-9)*4096)
            return [f"ds_read_b128 v[{XF[buf][j]}:{XF[buf][j]+3}], v{base} offset:{off+j*1024}" for j in range(4)]
        def epiB(p):
            g=[]
            for t in range(3):
                for jp in range(2):
                    A0=ACCB(p&1,t,2*jp); A1=ACCB(p&1,t,2*jp+1)
                    g.append([f"v_cvt_pk_bf16_f32 v{A0}, v{A0}, v{A0+1}", f"v_cvt_pk_bf16_f32 v{A0+1}, v{A0+2}, v{A0+3}",
                              f"v_cvt_pk_bf16_f32 v{A0+2}, v{A1}, v{A1+1}", f"v_cvt_pk_bf16_f32 v{A0+3}, v{A1+2}, v{A1+3}"])
                    off=(12*p+t)*2048+jp*1024
                    g.append([f"s_mov_b32 s43, {off}", f"buffer_store_dwordx4 v[{A0}:{A0+3}], v13, s[16:19], s43 offen"+SC])
            return g
        step=0
        for x in tl(0,0): a(x)
        tt=a.ltok()
        pend=[]
        for p in range(3):
            for sg in range(18):
                buf=step&1
                n0=324+(p*18+sg)*3
                last=(p==2 and sg==17)
                a.wait_lg(tt)
                a.wait_vm(wtok[n0+2])
                nx=[] if last else tl(buf^1,(sg+1)%18)
                k=0
                for t in range(3):
                    slot=(n0+t)%RING
                    for j in range(4):
                        A=ACCB(p&1,t,j); x=XF[buf][j]
                        c="0" if sg==0 else f"v[{A}:{A+3}]"
                        a(f"v_mfma_f32_16x16x32_bf16 v[{A}:{A+3}], a[{4*slot}:{4*slot+3}], v[{x}:{x+3}], {c}")
                        k+=1
                        if k%2==1 and k<=7 and nx:
                            a(nx[(k-1)//2])
                            if k==7: tt=a.ltok()
                        if pend and sg>=1 and k in (10,):
                            for ins in pend.pop(0): a(ins)
                    self.issue_paced()
                step+=1
            pend=epiB(p)
            xstamp(a,'f')
        for grp in pend:
            for ins in grp: a(ins)

def reduce_setup(a):
    a("v_and_b32 v1, 63, v0")
    mk_srd(a,8,P_WS,8*MAT,WS_PART)
    mk_srd(a,12,P_WS,MAT,WS_HC)
    mk_srd(a,16,P_OUT,MAT)
    mk_srd(a,20,P_WS,S*64,WS_SSQ)
    a(f"s_and_b32 s33, s{S_J}, 1")
    a(f"s_bfe_u32 s34, s{S_J}, 0x10001")
    a(f"s_lshr_b32 s35, s{S_J}, 2"); a("s_mul_i32 s35, s35, 3"); a(f"s_min_u32 s36, s{S_W}, 2"); a("s_add_u32 s35, s35, s36")
    a("v_and_b32 v3, 15, v1"); a("v_lshrrev_b32 v4, 4, v1")
    a("v_lshrrev_b32 v5, 3, v3"); a("v_and_b32 v6, 7, v3")
    a(f"s_mul_i32 s37, s{S_RB}, 73728"); a("s_mul_i32 s38, s35, 12288"); a("s_add_u32 s38, s38, s37")
    a("s_lshl_b32 s39, s33, 10"); a("s_add_u32 s38, s38, s39"); a("s_lshl_b32 s39, s34, 7"); a("s_add_u32 s38, s38, s39")
    a("v_lshlrev_b32 v2, 11, v5"); a("v_lshl_add_u32 v2, v4, 8, v2"); a("v_lshl_add_u32 v2, v6, 4, v2"); a("v_add_u32 v2, s38, v2")
    a("s_lshl_b32 s38, s33, 11"); a("s_add_u32 s38, s38, s37"); a("s_mul_i32 s39, s35, 12288"); a("s_add_u32 s38, s38, s39")
    a("s_lshl_b32 s39, s34, 7"); a("s_add_u32 s38, s38, s39")
    a("v_and_b32 v8, 1, v4"); a("v_lshlrev_b32 v7, 10, v8"); a("v_lshl_add_u32 v7, v5, 9, v7"); a("v_lshl_add_u32 v7, v6, 4, v7")
    a("v_lshrrev_b32 v9, 1, v4"); a("v_lshl_add_u32 v7, v9, 3, v7"); a("v_add_u32 v7, s38, v7")
    a(f"s_lshl_b32 s38, s{S_RB}, 6"); a("s_lshl_b32 s39, s33, 5"); a("s_add_u32 s38, s38, s39"); a("s_lshl_b32 s39, s34, 3"); a("s_add_u32 s38, s38, s39")
    a("v_lshl_add_u32 v10, v8, 4, v6"); a("v_add_u32 v10, s38, v10")
    a("v_lshlrev_b32 v37, 6, v10")
    a("v_lshl_add_u32 v11, v5, 1, v9"); a("v_mul_u32_u24 v11, 48, v11"); a("s_mul_i32 s39, s35, 192"); a("v_add_u32 v11, s39, v11")
    a(f"s_movk_i32 s38, {ROWB}"); a("v_mad_u32_u24 v10, v10, s38, v11")
    a("v_lshrrev_b32 v11, 1, v6")
    a("v_and_b32 v12, 1, v6"); a("v_mov_b32 v13, 0x3f80"); a("v_lshlrev_b32 v12, 4, v12"); a("v_lshlrev_b32 v13, v12, v13")
    for a_ in range(2):
        a(f"v_add_u32 v12, {2*a_}, v5"); a("v_cmp_eq_u32 vcc, v12, v4"); a("v_cndmask_b32 v14, 0, v13, vcc")
        for d in range(4):
            a(f"v_cmp_eq_u32 vcc, {d}, v11"); a(f"v_cndmask_b32 v{16+4*a_+d}, 0, v14, vcc")
def reduce_h(a):
    for P in range(3):
        if P: a(f"s_movk_i32 s40, {P*4096}")
        for a_ in range(2):
            q=24+(P*2+a_)*2
            a(f"buffer_load_dwordx2 v[{q}:{q+1}], v7, s[12:15], {'s40' if P else '0'} offen offset:{a_*256}"+SC)
    for i in range(3): a(f"buffer_load_dwordx4 v[{164+4*i}:{167+4*i}], v37, s[20:23], 0 offen offset:{16*i}"+SC)
    a("buffer_load_dword v163, v37, s[20:23], 0 offen offset:48"+SC)
def reduce_phase(a, htok):
    L=a.newlabel("RED")
    a(f"s_cmp_ge_u32 s{S_W}, 3"); a(f"s_cbranch_scc1 {L}")
    PB=64
    toks={}
    xstamp(a,'r')
    for s in range(8):
        for P in range(3):
            q=PB+(s*3+P)*4
            a(f"s_mov_b32 s40, {s*MAT+P*4096}")
            a(f"buffer_load_dwordx4 v[{q}:{q+3}], v2, s[8:11], s40 offen"+SC)
        toks[s]=a.vtok()
    xstamp(a,'r')
    AC=40
    a.wait_vm(htok)
    for i in (1,2,3): a(f"v_add_f32 v164, v164, v{164+i}"); a(f"v_add_f32 v168, v168, v{168+i}"); a(f"v_add_f32 v172, v172, v{172+i}")
    a("v_add_f32 v164, v164, v168"); a("v_add_f32 v164, v164, v172")
    a(f"s_mov_b32 s40, {f2u(1.0/D)}"); a(f"v_mov_b32 v165, {f2u(EPS)}"); a("v_fma_f32 v164, v164, s40, v165"); a("v_rcp_f32 v164, v164")
    HU=176
    for P in range(3):
        for a_ in range(2):
            q=24+(P*2+a_)*2; d=HU+(P*2+a_)*4
            a(f"v_lshlrev_b32 v{d}, 16, v{q}"); a(f"v_and_b32 v{d+1}, 0xffff0000, v{q}")
            a(f"v_lshlrev_b32 v{d+2}, 16, v{q+1}"); a(f"v_and_b32 v{d+3}, 0xffff0000, v{q+1}")
            for r in range(4): a(f"v_add_f32 v{d+r}, v{d+r}, v163")
    for s in range(8):
        a.wait_vm(toks[s])
        if s in (0,7): xstamp(a,'r')
        for P in range(3):
            q=PB+(s*3+P)*4
            for a_ in range(2):
                d=AC+(P*2+a_)*4; c="0" if s==0 else f"v[{d}:{d+3}]"
                a(f"v_mfma_f32_16x16x32_bf16 v[{d}:{d+3}], v[{16+4*a_}:{16+4*a_+3}], v[{q}:{q+3}], {c}")
    for i in range(24): a(f"v_fma_f32 v{AC+i}, v{AC+i}, v164, v{HU+i}")
    a("v_cmp_gt_u32 vcc, 8, v3")
    O=24
    for r in range(4):
        for P in range(3):
            X=AC+(P*2)*4+r; Y=AC+(P*2+1)*4+r; t=200+4*(P&1)
            a(f"v_cndmask_b32 v{t}, v{X}, v{Y}, vcc")
            a(f"v_mov_b32_dpp v{t+1}, v{t} row_ror:8 row_mask:0xf bank_mask:0xf")
            a(f"v_cndmask_b32 v{t+2}, v{t+1}, v{X}, vcc")
            a(f"v_cndmask_b32 v{t+3}, v{Y}, v{t+1}, vcc")
            a(f"v_cvt_pk_bf16_f32 v{O+3*r+P}, v{t+2}, v{t+3}")
    xstamp(a,'r')
    for i in range(3):
        a(f"buffer_store_dwordx4 v[{O+4*i}:{O+4*i+3}], v10, s[16:19], 0 offen offset:{16*i}")
    a.label(L)
```

```python
from ncommon import *
from n_p1 import pack_perm
import n_ffn2
from n_ffn2 import wo_frag_groups, wo_frag_setup, p3_pre, p3, reduce_setup, reduce_h, reduce_phase, ffn_role, pack_mid_groups, \
    PK_RAW, PK_RAWB, PK_VS1, PK_VS2, PK_OB, SD1, SD2, PK_VL2
WSA=162*1024
WB0=64*WSA
WBYTES=96*WSA
RING=48
PRE=int(os.environ.get('PRE','48')); PREA=int(os.environ.get('PREA','16'))
n_ffn2.PREA=PREA
TAIL=int(os.environ.get('TAIL','16'))
SD=int(os.environ.get('SD','1'))
SP=int(os.environ.get('SP','5'))
CAP=int(os.environ.get('CAP','2'))
PER0=int(os.environ.get('PER0','2'))
PERB=int(os.environ.get('PERB','2'))
PW=int(os.environ.get('PW','7'))
MIND=int(os.environ.get('MIND','10'))
LA=int(os.environ.get('LA','3'))
XSL=int(os.environ.get('XSL','14'))
PE=int(os.environ.get('PE','8'))
RB0=float(os.environ.get('RB0','1.0'))
RB1=float(os.environ.get('RB1','1.25'))
HPS=int(os.environ.get('HPS','2'))
SYF=int(os.environ.get('SYF','6'))

PA1=144; PA2=146
def wgu_setup(a, T, va):
    a(f"s_mul_hi_u32 s42, s{T}, 0x38e38e4"); a("s_mul_i32 s41, s42, 72"); a(f"s_sub_u32 s41, s{T}, s41")
    a("s_mul_hi_u32 s45, s42, 0x55555556"); a("s_mul_i32 s46, s45, 3"); a("s_sub_u32 s46, s42, s46")
    a("s_mul_i32 s45, s45, 96"); a("s_lshl_b32 s46, s46, 1"); a("s_add_u32 s45, s45, s46")
    a(f"s_mul_i32 s45, s45, {F*2}"); a("s_lshl_b32 s46, s41, 7"); a("s_add_u32 s45, s45, s46")
    a("v_and_b32 v244, 63, v0")
    a("v_bfe_u32 v245, v244, 4, 1"); a("v_mul_u32_u24 v245, 48, v245"); a("v_lshrrev_b32 v246, 5, v244"); a("v_add_u32 v245, v245, v246")
    a(f"v_mul_u32_u24 v245, {F*2}, v245")
    a("v_bfe_u32 v246, v244, 2, 2"); a("v_lshlrev_b32 v246, 1, v246"); a("v_and_b32 v247, 1, v244"); a("v_add_u32 v246, v246, v247")
    a("v_lshl_add_u32 v245, v246, 4, v245"); a("v_add_u32 v245, s45, v245")
    a("v_and_b32 v246, 2, v244"); a("v_cmp_eq_u32 vcc, 0, v246")
    a(f"v_mov_b32 v246, s{P_WU}"); a(f"v_mov_b32 v247, s{P_WG}"); a(f"v_cndmask_b32 v{va}, v246, v247, vcc")
    a(f"v_mov_b32 v246, s{P_WU+1}"); a(f"v_mov_b32 v247, s{P_WG+1}"); a(f"v_cndmask_b32 v{va+1}, v246, v247, vcc")
    a("v_mov_b32 v246, v245"); a("v_mov_b32 v247, 0")
    a(f"v_lshl_add_u64 v[{va}:{va+1}], v[246:247], 0, v[{va}:{va+1}]")

def wgu_sdesc(a, base, vs):
    a("s_mul_hi_u32 s45, s41, 0x1c71c71d"); a("s_mul_i32 s46, s45, 9"); a("s_sub_u32 s46, s41, s46")
    a(f"s_mul_i32 s45, s45, {8*WSA}")
    a("s_mul_i32 s47, s42, 5"); a("s_min_u32 s48, s46, 4"); a("s_add_u32 s47, s47, s48")
    a("s_lshl_b32 s48, s42, 2"); a("s_add_u32 s48, s48, s46"); a("s_add_u32 s48, s48, 86")
    a("s_sub_u32 s49, s46, 4"); a("s_cmp_lt_u32 s49, 4"); a("s_cselect_b32 s47, s48, s47")
    a("s_lshl_b32 s47, s47, 10")
    a(f"s_add_u32 s{base[0]}, s45, s47")
    for k in range(1,4): a(f"s_mov_b32 s{base[k]}, {WSA}")
    a("v_and_b32 v244, 63, v0"); a(f"v_lshlrev_b32 v{vs}, 4, v244")

def wd_decode(a, T):
    a(f"s_mul_hi_u32 s41, s{T}, 0x2aaaaaab")
    a("s_mul_i32 s42, s41, 6"); a(f"s_sub_u32 s42, s{T}, s42")
    a("s_mul_hi_u32 s43, s41, 0x1c71c71d")
    a("s_mul_i32 s44, s43, 9"); a("s_sub_u32 s44, s41, s44")
    a("s_and_b32 s41, s43, 1"); a("s_lshr_b32 s43, s43, 1")

def wd_voff(a, T, vreg):
    wd_decode(a,T)
    a("s_and_b32 s45, s44, 1"); a("s_lshl_b32 s45, s45, 8"); a("s_lshr_b32 s46, s44, 1"); a("s_add_u32 s45, s45, s46")
    a("s_cmp_lt_u32 s44, 8"); a("s_cselect_b32 s45, s45, 512")
    a("s_mul_i32 s46, s43, 576"); a("s_add_u32 s45, s45, s46"); a("s_lshl_b32 s46, s41, 2"); a("s_add_u32 s45, s45, s46")
    a("v_and_b32 v244, 63, v0"); a("v_and_b32 v245, 15, v244"); a("v_lshrrev_b32 v246, 4, v244")
    a("s_cmp_lt_u32 s44, 8"); a("s_cselect_b32 s46, 4, 0")
    a("v_lshlrev_b32 v247, s46, v246"); a("v_add_u32 v247, s45, v247")
    a(f"v_mul_u32_u24 v247, {ROWB}, v247"); a("v_mul_u32_u24 v248, 12, v245"); a("v_add_u32 v247, v247, v248")
    a("s_mul_i32 s49, s42, 192"); a(f"v_add_u32 v{vreg}, s49, v247")

def wd_soff(a, dst):
    a("s_lshl_b32 s45, s43, 2"); a("s_and_b32 s46, s42, 1"); a("s_lshl_b32 s46, s46, 1"); a("s_add_u32 s45, s45, s46"); a(f"s_mul_i32 s45, s45, {WSA}")
    a("s_mul_i32 s46, s41, 9"); a("s_add_u32 s46, s46, s44"); a("s_mul_i32 s46, s46, 9"); a("s_lshr_b32 s47, s42, 1"); a("s_mul_i32 s47, s47, 3"); a("s_add_u32 s46, s46, s47")
    a("s_lshl_b32 s46, s46, 10")
    a("s_add_u32 s45, s45, s46"); a(f"s_add_u32 s{dst}, s45, {WB0}")
def wd_sdesc(a, base, vs):
    wd_soff(a,base[0])
    a(f"s_movk_i32 s{base[1]}, 1024")
    a(f"s_mov_b32 s{base[2]}, {WSA-2048}")
    a(f"s_mov_b32 s{base[3]}, 0x40000000")
    a("v_and_b32 v244, 63, v0"); a(f"v_lshlrev_b32 v{vs}, 4, v244")

def pack_setup(a):
    a(f"s_lshl_b32 s5, s{S_RB}, 3"); a(f"s_add_u32 s5, s5, s{S_J}"); a("s_lshl_b32 s5, s5, 2"); a(f"s_add_u32 s5, s5, s{S_W}")
    wgu_setup(a,5,PA1)
    wgu_sdesc(a,SD1,PK_VS1)
    a(f"s_mov_b32 s68, {6*F*2}"); a("s_mov_b32 s69, 0")
    LW=a.newlabel("PKW"); LE=a.newlabel("PKE")
    a("s_cmp_ge_u32 s5, 272"); a(f"s_cbranch_scc1 {LW}")
    a("s_add_u32 s5, s5, 1024")
    wgu_setup(a,5,PA2)
    wgu_sdesc(a,SD2,PK_VS2)
    a(f"s_mov_b32 s70, {6*F*2}"); a("s_mov_b32 s71, 0"); a(f"s_mov_b32 s72, {6*F*2}"); a("s_mov_b32 s73, 0")
    a(f"s_branch {LE}")
    a.label(LW)
    a("s_sub_u32 s5, s5, 272")
    wd_voff(a,5,246)
    a("v_mov_b32 v247, 0")
    a(f"v_lshl_add_u64 v[{PA2}:{PA2+1}], v[246:247], 0, s[{P_WD}:{P_WD+1}]")
    a(f"s_mov_b32 s70, {8*ROWB}"); a("s_mov_b32 s71, 0")
    a(f"s_mov_b32 s72, {56*ROWB}"); a("s_cmp_lt_u32 s44, 8"); a(f"s_cselect_b32 s72, s72, {8*ROWB}"); a("s_mov_b32 s73, 0")
    wd_sdesc(a,SD2,PK_VS2)
    a.label(LE)

def pack_b0_groups(st):
    g=[[f"s_add_u32 s48, s{P_WS}, {WS_W}", f"s_addc_u32 s49, s{P_WS+1}, 0", f"s_mov_b32 s50, {WBYTES}", "s_mov_b32 s51, 0x20000",
        "s_mov_b32 s42, 0x05040100","s_mov_b32 s43, 0x07060302"]]
    for i in range(8):
        g.append([f"global_load_dwordx4 v[{PK_RAW+4*i}:{PK_RAW+4*i+3}], v[{PA1}:{PA1+1}], off"]+([f"v_lshl_add_u64 v[{PA1}:{PA1+1}], v[{PA1}:{PA1+1}], 0, s[68:69]"] if i<7 else []))
    def tk(a): st['pk1']=a.vtok()
    g[-1].append(tk)
    for i in range(8):
        d="s[70:71]" if i%2==0 else "s[72:73]"
        g.append([f"global_load_dwordx4 v[{PK_RAWB+4*i}:{PK_RAWB+4*i+3}], v[{PA2}:{PA2+1}], off"]+([f"v_lshl_add_u64 v[{PA2}:{PA2+1}], v[{PA2}:{PA2+1}], 0, {d}"] if i<7 else []))
    def tk2(a): st['pk2']=a.vtok()
    g[-1].append(tk2)
    return g

def pack_third(a, ob=64):
    L=a.newlabel("PK3")
    vm0=a.vm
    a(f"s_lshl_b32 s34, s{S_RB}, 1"); a(f"s_add_u32 s34, s34, s{S_J}"); a("s_sub_u32 s34, s34, 6"); a("s_lshl_b32 s34, s34, 2"); a(f"s_add_u32 s34, s34, s{S_W}")
    a("s_cmp_ge_u32 s34, 112"); a(f"s_cbranch_scc1 {L}")
    a("s_add_u32 s34, s34, 752")
    mk_srd(a,24,P_WS,WBYTES,WS_W)
    mk_srd(a,16,P_WD,F*D*2)
    wd_voff(a,34,PK_VL2)
    for i in range(8):
        a("s_cmp_lt_u32 s44, 8")
        a(f"s_mov_b32 s20, {8*i*ROWB}")
        a(f"s_cmov_b32 s20, {(64*(i>>1)+8*(i&1))*ROWB}")
        a(f"buffer_load_dwordx4 v[{PK_RAW+4*i}:{PK_RAW+4*i+3}], v{PK_VL2}, s[16:19], s20 offen")
    wd_soff(a,21)
    a(f"s_add_u32 s22, s21, {WSA}")
    a("v_and_b32 v244, 63, v0"); a("v_lshlrev_b32 v245, 4, v244")
    a("s_waitcnt vmcnt(0)")
    pack_perm(a,6,PK_RAW,ob)
    for e in range(6):
        a(f"buffer_store_dwordx4 v[{ob+4*e}:{ob+4*e+3}], v245, s[24:27], s{21+e//3} offen offset:{(e%3)*1024}"+SC)
    a.label(L)
    a.vm=vm0

V_X1,V_X2,V_TW,V_TL,V_PS,V_PL,V_PART,V_FA,V_FV,V_FS,V_TG=3,4,5,6,7,8,9,10,11,12,13
XB=[16,20,24,28]
E=lambda k,d: type(d)(os.environ.get(k,d)) if not isinstance(d,str) else os.environ.get(k,d)
PRE2=E('PRE2',48); G0=E('G0',4); HST=E('HST',0); SK=E('SK',3); PB=E('PB',5); PW=E('PW',5); MIND=E('MIND',10); LA=E('LA',3); R0=E('R0',2); RBE=E('RBE',5)
TCAP=E('TCAP',0); HS=eval(os.environ.get('HS','{1:1,3:3,7:8}')); SG0=E('SG0',30); RBE2=E('RBE2',14); PE=E('PE',8); RB0=E('RB0',1.0); RB1=E('RB1',1.0); SYF=E('SYF',6); DPS=E('DPS',6); HS1=E('HS1',3); HS2=E('HS2',7)
def ACC0(c,mt):
    if mt<4 and c<4: return ('a',192+(mt*4+c)*4)
    if mt>=4: return ('v',32+((mt-4)*5+c)*4)
    return ('v',112+mt*4)
def ACC1(c,mt): return ('v',128+(mt*4+c)*4)
def R4(x): return f"{x[0]}[{x[1]}:{x[1]+3}]"
XF=[[16,20,24,28],[32,36,40,44]]
def ACCB(f,mt): return 112+(f*4+mt)*4
def WREG(s): return f"a[{4*s}:{4*s+3}]" if s<64 else f"v[{48+4*(s-64)}:{48+4*(s-64)+3}]"
def cost(x):
    if callable(x): return 0
    return 2 if x.startswith("buffer_") else 1

class FFN:
    def __init__(self,a):
        self.a=a; self.n=0; self.wtok={}; self.g=0
        self.free=list(range(RING)); self.slot={}
        self.hi=[]; self.lo=[]; self.inline=True
    def release(self,n): self.free.append(self.slot[n])
    def can(self): return self.n<324 and len(self.free)>0
    def em(self,x):
        if callable(x): x()
        else: self.a(x)
    def ring_setup(self):
        a=self.a
        mk_srd(a,8,P_WS,WBYTES,WS_W)
        ffn_role(a,38,37)
        a("s_and_b32 s38, s38, 1")
        a("s_lshl_b32 s39, s37, 1"); a("s_add_u32 s39, s39, s38"); a("s_lshl_b32 s39, s39, 2"); a(f"s_add_u32 s39, s39, s{S_W}")
        a(f"s_mul_i32 s40, s39, {WSA}")
        a("s_lshl_b32 s37, s37, 2"); a(f"s_add_u32 s37, s37, s{S_W}"); a(f"s_mul_i32 s37, s37, {WSA}"); a(f"s_add_u32 s37, s37, {WB0}")
        a(f"s_mul_i32 s39, s38, {81*1024}"); a("s_add_u32 s54, s37, s39")
        a(f"s_add_u32 s55, s37, {81*1024}"); a("s_sub_u32 s55, s55, s39")
        a("v_and_b32 v1, 63, v0")
        a("v_lshlrev_b32 v2, 4, v1")
    def issue_w(self):
        a=self.a; n=self.n
        slot=self.free.pop(0); self.slot[n]=slot
        if os.environ.get("NOW") and n>=RING:
            self.wtok[n]=self.wtok[RING-1]; self.n=n+1; return
        for x in [x for x in self.hi if 's40' in x]:
            self.hi.remove(x); a(x)
        post=None
        if n<243:
            off=(self.g%4)*1024
            if self.g%4==3: post="s_add_u32 s40, s40, 4096"
            self.g+=1
        else:
            m=n-243; t=m%3; sg=(m//3)%9
            off=t*1024
            if t==2: post=f"s_add_u32 s40, s40, {9216 if sg<8 else (3072-8*9216)&0xffffffff}"
        if n==161: post="s_mov_b32 s40, s54"; self.g=0
        if n==242: post="s_mov_b32 s40, s55"
        a(f"buffer_load_dwordx4 {WREG(slot)}, v2, s[8:11], s40 offen offset:{off}"+SC)
        self.wtok[n]=a.vtok()
        if post and n<323:
            if self.inline: a(post)
            else: self.hi.append(post)
        self.n=n+1
    def prefetch(self,k):
        for _ in range(k): self.issue_w()
    def hc_list(self):
        L=[]
        sc=os.environ.get("SCH",SC)
        for q in range(9):
            for i in range(4):
                pre=["s_mov_b32 m0, s35"] if i==0 else []
                post=["s_add_u32 s35, s35, 16384","s_add_u32 s33, s33, 8192"] if i==3 else []
                L.append((pre,f"buffer_load_dwordx4 v2, s[12:15], s33 offen offset:{i*1024}"+sc+" lds",post,q if i==3 else None))
        return L
    def prologue(self):
        a=self.a
        mk_srd(a,12,P_WS,MAT,WS_HC)
        a(f"s_and_b32 s36, s{S_W}, 1"); a(f"s_lshr_b32 s34, s{S_W}, 1")
        a("s_lshl_b32 s35, s34, 13"); a("s_lshl_b32 s37, s36, 12"); a("s_add_u32 s35, s35, s37")
        a(f"s_xor_b32 s33, s{S_RB}, s36"); a("s_mul_i32 s33, s33, 73728"); a("s_lshl_b32 s34, s34, 12"); a("s_add_u32 s33, s33, s34")
        self.ht={}
        self.hq=self.hc_list()
        def emit_h(k):
            for _ in range(k):
                pre,ins,post,done=self.hq.pop(0)
                for x in pre: a(x); a("s_nop 0")
                a(ins)
                if done is not None: self.ht[done]=a.vtok()
                for x in post: a(x)
        emit_h(4*min(G0,2))
        mk_srd(a,16,P_WS,8*MAT,WS_PART)
        mk_srd(a,20,P_WS,256*36864,WS_T)
        flag_srd(a)
        a(f"v_add_u32 v{V_X1}, 65536, v2"); a(f"v_add_u32 v{V_X2}, 131072, v2")
        a(f"s_lshl_b32 s38, s{S_W}, 13"); a(f"v_add_u32 v{V_TW}, s38, v2")
        a(f"s_lshl_b32 s39, s{S_W}, 8"); a("s_add_u32 s39, s39, 32768")
        a("v_lshrrev_b32 v12, 4, v1"); a("v_lshlrev_b32 v12, 10, v12"); a("v_and_b32 v13, 15, v1"); a("v_lshl_add_u32 v12, v13, 4, v12"); a(f"v_add_u32 v{V_TL}, s39, v12")
        a(f"s_xor_b32 s41, s{S_RB}, 1"); a("s_lshl_b32 s41, s41, 3"); a(f"s_add_u32 s41, s41, s{S_J}")
        a("s_mul_i32 s42, s41, 36864"); a(f"v_add_u32 v{V_PS}, s42, v{V_TW}"); a(f"v_add_u32 v{V_PL}, s42, v{V_TL}")
        a("s_lshl_b32 s41, s41, 6"); a(f"s_add_u32 s41, s41, {FL_T}"); a(f"v_mov_b32 v{V_FA}, s41")
        gflag_addr(a,6,FL_T); a(f"v_mov_b32 v{V_FS}, s6"); a(f"v_mov_b32 v{V_TG}, s{S_TAG}")
        a(f"s_mul_i32 s41, s{S_J}, {MAT}"); a(f"s_mul_i32 s42, s{S_RB}, 73728"); a("s_add_u32 s41, s41, s42")
        a(f"s_mul_i32 s42, s{S_W}, 6144"); a("s_add_u32 s41, s41, s42")
        a(f"v_add_u32 v{V_PART}, s41, v2")
        a("s_movk_i32 s44, 4096")
        a(f"s_lshl_b32 s48, s{S_RB}, 3"); a(f"s_add_u32 s48, s48, s{S_J}"); a("s_lshl_b32 s48, s48, 2"); a(f"s_add_u32 s48, s48, s{S_W}"); a("s_lshl_b32 s48, s48, 6"); a(f"s_add_u32 s48, s48, {FL_P}")
        a(f"s_lshl_b32 s46, s{S_RB}, 3"); a(f"s_add_u32 s46, s46, s{S_J}"); a("s_mul_i32 s46, s46, 36864")
        a(f"s_lshl_b32 s47, s{S_W}, 10"); a("s_add_u32 s46, s46, s47"); a("s_add_u32 s47, s47, 36864")
        self.prefetch(max(PRE2-self.n,0))
        emit_h(4*max(G0-2,0))
    def gap(self, must=(), cap=2, budget=None):
        u=0
        for x in must:
            u+=(x[0] if isinstance(x,tuple) else cost(x)); self.em(x[1] if isinstance(x,tuple) else x)
        while self.hi and u<cap:
            self.em(self.hi.pop(0)); u+=1
        k=0
        while self.lo and (budget is None or k<budget):
            c=cost(self.lo[0])
            if u+c>cap: break
            x=self.lo.pop(0); self.em(x); u+=c
            if c: k+=1
        return k
    def flush(self):
        while self.hi: self.em(self.hi.pop(0))
        while self.lo: self.em(self.lo.pop(0))
    def wait(self, vt=None, lt=None):
        a=self.a
        p=[]
        if vt is not None: p.append(f"vmcnt({min(a.vm-vt,63)})")
        if lt is not None: p.append(f"lgkmcnt({min(a.lg-lt,15)})")
        a("s_waitcnt "+" ".join(p))
    def main(self):
        a=self.a; wtok=self.wtok
        self.inline=False
        T0=18-SK
        seq=[(0,P,mt) for P in range(18) for mt in range(8)]+[(1,P,mt) for P in range(T0) for mt in (4,5,6,7,0,1,2,3)]
        seq+=[(1,P,mt) for P in range(T0,18) for mt in (4,5,6,7)]+[(1,P,mt) for P in range(T0,18) for mt in (0,1)]+[(1,P,mt) for P in range(T0,18) for mt in (2,3)]
        xbase=[2,V_X1,V_X2]
        def xrd(i):
            p,P,mt=seq[i]; b=XB[i%4]
            return f"ds_read_b128 v[{b}:{b+3}], v{xbase[P//8]} offset:{(P%8)*8192+mt*1024}"
        def tile_t(D):
            return [f"v_mul_f32 v{D}, v{D}, v{D+2}", f"v_mul_f32 v{D+1}, v{D+1}, v{D+3}"]
        stok={}
        def transp(L):
            return [f"v_permlane32_swap_b32 v{L}, v{L+2}", f"v_permlane32_swap_b32 v{L+1}, v{L+3}",
                    f"v_permlane16_swap_b32 v{L}, v{L+1}", f"v_permlane16_swap_b32 v{L+2}, v{L+3}"]
        HELD=[36,40,44,32]; TMP=ACC0(4,5)[1]
        def epi0():
            q=[]
            LP=ACC0(4,4)[1]; LO=ACC0(4,0)[1]
            def left(L,mts):
                r=[]
                for i,mt in enumerate(mts):
                    D=ACC0(4,mt)[1]
                    r+=tile_t(D)+[f"v_cvt_pk_bf16_f32 v{L+i}, v{D}, v{D+1}"]
                return r+transp(L)
            q+=left(LP,range(4,8))
            q.append(f"buffer_store_dwordx4 v[{LP}:{LP+3}], v{V_PL}, s[20:23], 0 offen"+SC)
            for m in range(4):
                mt=m+4
                D=[ACC0(c,mt)[1] for c in range(4)]
                for c in range(4):
                    q+=tile_t(D[c])+[f"v_cvt_pk_bf16_f32 v{D[0]+c}, v{D[c]}, v{D[c]+1}"]
                q.append(f"buffer_store_dwordx4 v[{D[0]}:{D[0]+3}], v{V_PS}, s[20:23], 0 offen offset:{m*1024}"+SC)
            def chk(): assert stok.get('pb'), "own t written before the x-dead barrier"
            for m in range(4):
                H=HELD[m]; T=TMP
                for c in range(4):
                    A=ACC0(c,m)[1]
                    q+=[f"v_accvgpr_read_b32 v{T+r}, a{A+r}" for r in range(4)]
                    q+=tile_t(T)+[f"v_cvt_pk_bf16_f32 v{H+c}, v{T}, v{T+1}"]
                q.append(chk)
                q.append(f"ds_write_b128 v{V_TW}, v[{H}:{H+3}] offset:{m*1024}")
            q.append(lambda: self.free.extend(range(RING,64)))
            q+=left(LO,range(4))
            q.append(f"ds_write_b128 v{V_TL}, v[{LO}:{LO+3}]")
            q.append(lambda: self.free.extend(range(64,80)))
            return q
        def epi1(mt):
            D=[ACC1(c,mt)[1] for c in range(4)]
            q=[]
            for c in range(4): q+=tile_t(D[c])+[f"v_cvt_pk_bf16_f32 v{D[0]+c}, v{D[c]}, v{D[c]+1}"]
            if mt>=4:
                q.append(f"buffer_store_dwordx4 v[{D[0]}:{D[0]+3}], v{V_PS}, s[20:23], s44 offen offset:{(mt-4)*1024}"+SC)
                if mt==7: q.append(lambda: stok.__setitem__('t',a.vtok()))
            else: q.append(f"ds_write_b128 v{V_TW}, v[{D[0]}:{D[0]+3}] offset:{4096+mt*1024}")
            return q
        xstamp(a,'f')
        self.wait(vt=self.ht[HST]); a("s_barrier")
        xstamp(a,'l'); xstamp(a,'h'); xstamp(a,'f')
        xt={}
        for i in range(LA):
            a(xrd(i)); xt[i]=a.ltok()
        N=len(seq)
        dstep=0
        def dma_item():
            pre,ins,post,done=self.hq.pop(0)
            def go():
                if pre and pre[0] in self.hi:
                    while True:
                        x=self.hi.pop(0); a(x)
                        if x==pre[0]: break
                    a("s_nop 0")
                a(ins)
                if done is not None: self.ht[done]=a.vtok()
                self.hi.extend(post)
                if self.hq: self.hi.extend(self.hq[0][0])
            return (2,go)
        if self.hq: self.hi.extend(self.hq[0][0])
        pend1=[]
        for i,(p,P,mt) in enumerate(seq):
            NT=5 if p==0 else 4
            n0=(P*5 if p==0 else 90+P*4)
            tail=(p==1 and P>=T0)
            first = (mt==0 if p==0 else (mt==4 and P<=T0))
            gi=(mt if p==0 else (mt+4)%8)
            vt=None
            if first:
                dstep=0
                if i>0:
                    pn=(5 if (p==0 or P==0) else 4)
                    for k in range(n0-pn,n0): self.release(k)
                if p==0 and P in HS:
                    self.wait(vt=self.ht[HS[P]]); a("s_barrier")
                if p==1 and P==PB: a("s_barrier"); stok['pb']=True
                vt=wtok[n0+NT-1] if not tail else wtok[161]
                if p==0 and P==9: xstamp(a,'f')
                if p==0 and P in (8,10,12,14,16): xstamp(a,'p')
                if p==1 and P in (0,4,8,12): xstamp(a,'p')
                if p==0 and P in (0,1,2,3,4,5,6,7,8,9): xstamp(a,'s')
                if p==1 and P==0: self.lo+=[x for x in epi0() if callable(x) or not ((os.environ.get('NOEPI0')) or (os.environ.get('NOST0') and 'store' in x))]
                if tail: assert not self.lo, "pass-0 epilogue not finished"
            self.wait(vt=vt,lt=xt[i])
            bud=(None if tail else R0)
            for f in range(NT):
                A=(ACC0 if p==0 else ACC1)(f,mt)
                c="0" if P==0 else R4(A)
                x=XB[i%4]
                a(f"v_mfma_f32_16x16x32_bf16 {R4(A)}, {WREG(self.slot[n0+f])}, v[{x}:{x+3}], {c}")
                must=[]
                if f==0 and i+LA<N:
                    def rd(i=i): a(xrd(i+LA)); xt[i+LA]=a.ltok()
                    must.append((1,rd))
                wok=self.can() and (p==1 or P>=PW or self.n<n0+NT+MIND)
                if f in (2,3) and f<NT-1 and p==0 and self.hq and dstep<DPS and not (f==2 and wok and self.n<n0+NT+MIND):
                    must.append(dma_item()); dstep+=1
                elif f==2 and wok and not (tail and self.lo): must.append((2,self.issue_w))
                cap=(1 if f==NT-1 else 2)
                if tail: cap+=TCAP
                k=self.gap(must,cap,bud)
                if bud is not None: bud-=k
            if tail:
                self.lo+=pend1; pend1=epi1(mt) if P==17 else []
            if p==0 and gi==7 and P==17: xstamp(a,'f')
        xstamp(a,'f')
        self.flush()
        for k in range(90+4*T0,162): self.release(k)
        for x in pend1: self.em(x)
        a("s_waitcnt lgkmcnt(0)")
        a("s_barrier")
        xstamp(a,'f')
        def tl(buf,sg):
            base,off=(2,sg*4096) if sg<16 else (V_X1,sg*4096-65536)
            return [f"ds_read_b128 v[{XF[buf][j]}:{XF[buf][j]+3}], v{base} offset:{off+j*1024}" for j in range(4)]
        def epiB(sp):
            g=[f"s_mov_b32 s43, {sp*24576}", f"s_mov_b32 s45, {sp*24576+4096}"]
            for t in range(3):
                for jp in range(2):
                    A0=ACCB(3*sp+t,2*jp); A1=ACCB(3*sp+t,2*jp+1)
                    g+=[f"v_cvt_pk_bf16_f32 v{A0}, v{A0}, v{A0+1}", f"v_cvt_pk_bf16_f32 v{A0+1}, v{A0+2}, v{A0+3}",
                        f"v_cvt_pk_bf16_f32 v{A0+2}, v{A1}, v{A1+1}", f"v_cvt_pk_bf16_f32 v{A0+3}, v{A1+2}, v{A1+3}"]
                    g+=[f"buffer_store_dwordx4 v[{A0}:{A0+3}], v{V_PART}, s[16:19], s{43 if t<2 else 45} offen offset:{(t%2)*2048+jp*1024}"+SC]
            g.append(lambda sp=sp: stok.__setitem__(f'g{sp}',a.vtok()))
            return g
        def pflag(g):
            if g: a(f"s_mov_b32 s49, {g*65536}")
            a("s_mov_b64 exec, 1"); a(f"buffer_store_dword v{V_TG}, v{V_FS}, s[28:31], {'s49' if g else '0'} offen sc1"); a("s_mov_b64 exec, -1")
        acc=[0.0]
        steps=[(0,sg,list(range(9))) for sg in range(9)]+[(1,9+sg,[3*sp,3*sp+1,3*sp+2]) for sp in range(3) for sg in range(9)]
        for x in tl(0,0): a(x)
        tt=a.ltok()
        cB=0; n=162
        ftok=None; dq=[]
        sct=os.environ.get("SCT",SC)
        for si,(h,sg,fl) in enumerate(steps):
            buf=si&1
            last=(si==len(steps)-1)
            if h==0 and sg==0: xstamp(a,'b')
            if h==0 and sg==SD:
                xstamp(a,'b')
                self.wait(vt=stok['t']); xstamp(a,'b'); a("s_barrier")
                a("s_mov_b64 exec, 1"); a(f"buffer_store_dword v{V_TG}, v{V_FS}, s[28:31], 0 offen sc1"); a("s_mov_b64 exec, -1")
                a(f"v_mov_b32 v{V_FS}, s48")
                xstamp(a,'b')
            if h==0 and sg==SP:
                a(f"buffer_load_dword v{V_FV}, v{V_FA}, s[28:31], 0 offen sc1"); ftok=a.vtok()
            if h==0 and sg==SP+1:
                Lok=a.newlabel("TOK"); Lp=a.newlabel("TPL")
                xstamp(a,'b')
                self.wait(vt=ftok); vm0=a.vm
                a("s_mov_b32 s3, 0")
                a.label(Lp)
                a(f"v_cmp_ne_u32 vcc, s{S_TAG}, v{V_FV}")
                a(f"s_cbranch_vccz {Lok}")
                a(f"buffer_load_dword v{V_FV}, v{V_FA}, s[28:31], 0 offen sc1")
                a("s_waitcnt vmcnt(0)")
                a("s_add_u32 s3, s3, 1"); a("s_cmp_lt_u32 s3, 0x40000"); a(f"s_cbranch_scc1 {Lp}")
                a.label(Lok); a.vm=vm0
                xstamp(a,'b')
                a("s_mov_b32 m0, s47")
                for k in range(9):
                    def d(k=k):
                        for x in [x for x in self.hi if 's46' in x or 'm0' in x]: self.hi.remove(x); a(x); a("s_nop 0")
                        a("buffer_load_dwordx4 v2, s[20:23], s46 offen"+sct+" lds")
                        if k==8: stok['d']=a.vtok()
                        else: self.hi.extend(["s_add_u32 m0, m0, 4096","s_add_u32 s46, s46, 4096"])
                    dq.append(d)
            if si==SG0:
                assert 'g0' in stok
                self.wait(vt=stok['g0']); pflag(0)
            nsg=steps[si+1][1] if not last else None
            if os.environ.get('VERB'): print('step',si,'issued',self.n-162,'consumed',cB,'free',len(self.free))
            nx=[] if (last or si==8) else tl(buf^1,nsg)
            if h==1 and sg==9 and fl[0]>0:
                self.flush()
                e=epiB(fl[0]//3-1)
                if fl[0]==6:
                    rs=[(lambda: stok.__setitem__('h',a.vtok())) if x=='HTOK' else x for x in red_setup()]
                    q=e[:2]; e=e[2:]; per=-(-len(rs)//6)
                    for k in range(6):
                        q+=e[5*k:5*k+5]+rs[per*k:per*(k+1)]
                    q+=e[30:]
                    e=q
                self.lo+=e
            bud=RBE if si<27 else RBE2
            k=0
            rpos=(1,5,9,13) if h==0 else (1,2,5,6)
            for fi,f in enumerate(fl):
                vt=wtok[n+fi+2] if fi%3==0 else None
                lt=tt if fi==0 else None
                if si==8 and fi==SYF:
                    while dq: dq.pop(0)()
                    xstamp(a,'b')
                    self.wait(vt=stok['d']); xstamp(a,'b'); a("s_barrier"); xstamp(a,'b')
                    nx=tl(buf^1,9); k=0; rpos=(1,2,5,6)
                if vt is not None or lt is not None: self.wait(vt=vt,lt=lt)
                for mt in range(4):
                    A=ACCB(f,mt); x=XF[buf][mt]
                    c="0" if si==0 else f"v[{A}:{A+3}]"
                    a(f"v_mfma_f32_16x16x32_bf16 v[{A}:{A+3}], {WREG(self.slot[n+fi])}, v[{x}:{x+3}], {c}")
                    k+=1
                    must=[]
                    if nx and k in rpos:
                        def rd(ins=nx[rpos.index(k)],lastr=(k==rpos[3])):
                            nonlocal tt
                            a(ins)
                            if lastr: tt=a.ltok()
                        must.append((1,rd))
                    if mt==2:
                        if dq: must.append((2,dq.pop(0)))
                        elif not (SP+1<=si<=PE):
                            acc[0]=min(acc[0]+(RB0 if si<=SP else RB1),3.0)
                            if acc[0]>=1 and self.can(): must.append((2,self.issue_w)); acc[0]-=1
                    if mt==1 and not must and not dq and not self.lo and not (SP+1<=si<=PE) and acc[0]>=1.5 and self.can():
                        must.append((2,self.issue_w)); acc[0]-=1
                    cap=2
                    if mt==3 and (fi%3==2): cap=1
                    kk=self.gap(must,cap,bud)
                    bud-=kk
                self.release(n+fi)
            n+=len(fl); cB+=len(fl)
            if si==8: xstamp(a,'f'); xstamp(a,'b')
            if h==1 and sg==17: xstamp(a,'f')
        self.flush()
        for x in epiB(2): self.em(x)
        stamp(a,10)
        xstamp(a,'r')
        xstamp(a,'r')
        self.wait(vt=stok['g1']); pflag(1)
        L=a.newlabel("RED"); Lp=a.newlabel("RPL"); Le=a.newlabel("RPE"); L3=a.newlabel("RW3")
        xstamp(a,'r')
        a(f"buffer_load_dword v{R_T}, v{R_FA}, s[28:31], 0 offen sc1")
        self.wait(vt=stok['g2']); pflag(2)
        xstamp(a,'r')
        a(f"s_cmp_ge_u32 s{S_W}, 3"); a(f"s_cbranch_scc1 {L}")
        red_hprep(a)
        a("s_mov_b32 s3, 0")
        a("s_waitcnt vmcnt(1)")
        a.label(Lp)
        a(f"v_cmp_ne_u32 vcc, s{S_TAG}, v{R_T}")
        a(f"s_cbranch_vccz {Le}")
        a(f"buffer_load_dword v{R_T}, v{R_FA}, s[28:31], 0 offen sc1")
        a("s_waitcnt vmcnt(0)")
        a("s_add_u32 s3, s3, 1"); a("s_cmp_lt_u32 s3, 0x40000"); a(f"s_cbranch_scc1 {Lp}")
        a.label(Le)
        stamp(a,11)
        xstamp(a,'r')
        a.vm+=0
        toks=red_loads(a)
        xstamp(a,'r')
        red_phase(a,toks)
        a.label(L)

R_PA,R_HA,R_SA,R_OA,R_FA,R_N=112,113,114,115,116,117
R_T=118
R_SEL=124
R_H=132
R_SQ=144
R_MU=156
class Rec:
    def __init__(s): s.l=[]
    def __call__(s,x):
        if x.startswith('s_addc'): s.l[-1]+='\n'+x
        else: s.l.append(x)
def red_setup():
    a=Rec(); T=R_T
    v1,v4,v5,v6,v8,v9=T,T+1,T+2,T+3,T+4,T+5
    mk_srd(a,64,P_WS,S*64,WS_SSQ)
    mk_srd(a,68,P_OUT,MAT)
    a(f"v_and_b32 v{v1}, 63, v0")
    a(f"s_and_b32 s33, s{S_J}, 1")
    a(f"s_bfe_u32 s34, s{S_J}, 0x10001")
    a(f"s_min_u32 s36, s{S_W}, 2"); a(f"s_lshr_b32 s41, s{S_J}, 2"); a("s_lshl_b32 s35, s36, 1"); a("s_add_u32 s35, s35, s41")
    a(f"v_and_b32 v{R_N}, 15, v{v1}"); a(f"v_lshrrev_b32 v{v4}, 4, v{v1}")
    a(f"v_lshrrev_b32 v{v5}, 3, v{R_N}"); a(f"v_and_b32 v{v6}, 7, v{R_N}")
    a(f"s_mul_i32 s37, s{S_RB}, 73728"); a("s_mul_i32 s38, s35, 12288"); a("s_add_u32 s38, s38, s37")
    a("s_lshl_b32 s39, s33, 10"); a("s_add_u32 s39, s39, s38"); a("s_lshl_b32 s42, s34, 7"); a("s_add_u32 s39, s39, s42")
    a(f"v_lshlrev_b32 v{R_PA}, 11, v{v5}"); a(f"v_lshl_add_u32 v{R_PA}, v{v4}, 8, v{R_PA}"); a(f"v_lshl_add_u32 v{R_PA}, v{v6}, 4, v{R_PA}"); a(f"v_add_u32 v{R_PA}, s39, v{R_PA}")
    a("s_lshl_b32 s39, s33, 11"); a("s_add_u32 s39, s39, s38"); a("s_add_u32 s39, s39, s42")
    a(f"v_and_b32 v{v8}, 1, v{v4}"); a(f"v_lshlrev_b32 v{R_HA}, 10, v{v8}"); a(f"v_lshl_add_u32 v{R_HA}, v{v5}, 9, v{R_HA}"); a(f"v_lshl_add_u32 v{R_HA}, v{v6}, 4, v{R_HA}")
    a(f"v_lshrrev_b32 v{v9}, 1, v{v4}"); a(f"v_lshl_add_u32 v{R_HA}, v{v9}, 3, v{R_HA}"); a(f"v_add_u32 v{R_HA}, s39, v{R_HA}")
    a(f"s_lshl_b32 s38, s{S_RB}, 6"); a("s_lshl_b32 s39, s33, 5"); a("s_add_u32 s38, s38, s39"); a("s_lshl_b32 s39, s34, 3"); a("s_add_u32 s38, s38, s39")
    a(f"v_lshl_add_u32 v{R_OA}, v{v8}, 4, v{v6}"); a(f"v_add_u32 v{R_OA}, s38, v{R_OA}")
    a(f"v_lshlrev_b32 v{R_SA}, 6, v{R_OA}")
    a("s_movk_i32 s50, 4096"); a("s_movk_i32 s51, 8192")
    for P in range(3):
        for a_ in range(2):
            q=R_H+(P*2+a_)*2
            a(f"buffer_load_dwordx2 v[{q}:{q+1}], v{R_HA}, s[12:15], {('0','s50','s51')[P]} offen offset:{a_*256}"+SC)
    for i in range(3): a(f"buffer_load_dwordx4 v[{R_SQ+4*i}:{R_SQ+4*i+3}], v{R_SA}, s[64:67], 0 offen offset:{16*i}"+SC)
    a(f"buffer_load_dword v{R_MU}, v{R_SA}, s[64:67], 0 offen offset:48"+SC)
    a.l.append('HTOK')
    a(f"v_lshl_add_u32 v{R_FA}, v{v5}, 1, v{v9}"); a(f"v_mul_u32_u24 v{R_FA}, 48, v{R_FA}"); a("s_mul_i32 s39, s35, 192"); a(f"v_add_u32 v{R_FA}, s39, v{R_FA}")
    a(f"s_movk_i32 s38, {ROWB}"); a(f"v_mad_u32_u24 v{R_OA}, v{R_OA}, s38, v{R_FA}")
    a(f"v_lshrrev_b32 v{v9}, 1, v{v6}")
    a(f"v_and_b32 v{v8}, 1, v{v6}"); a(f"v_mov_b32 v{v6}, 0x3f80"); a(f"v_lshlrev_b32 v{v8}, 4, v{v8}"); a(f"v_lshlrev_b32 v{v6}, v{v8}, v{v6}")
    for a_ in range(2):
        a(f"v_add_u32 v{v8}, {2*a_}, v{v5}"); a(f"v_cmp_eq_u32 vcc, v{v8}, v{v4}"); a(f"v_cndmask_b32 v{R_FA}, 0, v{v6}, vcc")
        for d in range(4):
            a(f"v_cmp_eq_u32 vcc, {d}, v{v9}"); a(f"v_cndmask_b32 v{R_SEL+4*a_+d}, 0, v{R_FA}, vcc")
    a("s_lshl_b32 s38, s36, 8"); a(f"s_lshl_b32 s39, s{S_RB}, 3"); a("s_add_u32 s38, s38, s39"); a("s_lshl_b32 s38, s38, 2"); a("s_lshl_b32 s39, s41, 1"); a("s_add_u32 s38, s38, s39")
    a(f"v_bfe_u32 v{R_FA}, v{v1}, 1, 3"); a(f"v_lshlrev_b32 v{R_FA}, 2, v{R_FA}"); a(f"v_and_b32 v{v8}, 1, v{v1}"); a(f"v_add_u32 v{R_FA}, v{R_FA}, v{v8}")
    a(f"v_add_u32 v{R_FA}, s38, v{R_FA}"); a(f"v_lshlrev_b32 v{R_FA}, 6, v{R_FA}"); a(f"v_add_u32 v{R_FA}, {FL_P}, v{R_FA}")
    return a.l
R_PB=16; R_AC=160; R_HU=184; R_O=208; R_X=220
def red_loads(a):
    toks={}
    for s in range(8):
        for P in range(3):
            q=R_PB+(s*3+P)*4
            if P==0: a(f"s_mov_b32 s40, {s*MAT}"); a(f"s_add_u32 s41, s40, 8192")
            if P<2: a(f"s_add_u32 s42, s40, 4096") if P==1 else None
            a(f"buffer_load_dwordx4 v[{q}:{q+3}], v{R_PA}, s[16:19], s{(40,42,41)[P]} offen"+SC)
        toks[s]=a.vtok()
    return toks
def red_hprep(a):
    q=R_SQ
    for i in (1,2,3): a(f"v_add_f32 v{q}, v{q}, v{q+i}"); a(f"v_add_f32 v{q+4}, v{q+4}, v{q+4+i}"); a(f"v_add_f32 v{q+8}, v{q+8}, v{q+8+i}")
    a(f"v_add_f32 v{q}, v{q}, v{q+4}"); a(f"v_add_f32 v{q}, v{q}, v{q+8}")
    a(f"s_mov_b32 s40, {f2u(1.0/D)}"); a(f"v_mov_b32 v{q+1}, {f2u(EPS)}"); a(f"v_fma_f32 v{q}, v{q}, s40, v{q+1}"); a(f"v_rcp_f32 v{q}, v{q}")
    for P in range(3):
        for a_ in range(2):
            h=R_H+(P*2+a_)*2; d=R_HU+(P*2+a_)*4
            a(f"v_lshlrev_b32 v{d}, 16, v{h}"); a(f"v_and_b32 v{d+1}, 0xffff0000, v{h}")
            a(f"v_lshlrev_b32 v{d+2}, 16, v{h+1}"); a(f"v_and_b32 v{d+3}, 0xffff0000, v{h+1}")
            for r in range(4): a(f"v_add_f32 v{d+r}, v{d+r}, v{R_MU}")
def red_phase(a,toks):
    AC=R_AC
    for s in range(8):
        a.wait_vm(toks[s])
        if s in (0,7): xstamp(a,'r')
        for P in range(3):
            q=R_PB+(s*3+P)*4
            for a_ in range(2):
                d=AC+(P*2+a_)*4; c="0" if s==0 else f"v[{d}:{d+3}]"
                a(f"v_mfma_f32_16x16x32_bf16 v[{d}:{d+3}], v[{R_SEL+4*a_}:{R_SEL+4*a_+3}], v[{q}:{q+3}], {c}")
    for i in range(24): a(f"v_fma_f32 v{AC+i}, v{AC+i}, v{R_SQ}, v{R_HU+i}")
    a(f"v_cmp_gt_u32 vcc, 8, v{R_N}")
    O=R_O
    for r in range(4):
        for P in range(3):
            X=AC+(P*2)*4+r; Y=AC+(P*2+1)*4+r; t=R_X+4*(P&1)
            a(f"v_cndmask_b32 v{t}, v{X}, v{Y}, vcc")
            a(f"v_mov_b32_dpp v{t+1}, v{t} row_ror:8 row_mask:0xf bank_mask:0xf")
            a(f"v_cndmask_b32 v{t+2}, v{t+1}, v{X}, vcc")
            a(f"v_cndmask_b32 v{t+3}, v{Y}, v{t+1}, vcc")
            a(f"v_cvt_pk_bf16_f32 v{O+3*r+P}, v{t+2}, v{t+3}")
    xstamp(a,'r')
    for i in range(3):
        a(f"buffer_store_dwordx4 v[{O+4*i}:{O+4*i+3}], v{R_OA}, s[68:71], 0 offen offset:{16*i}")
```

```python
from ncommon import *
L_X=0; L_WQ=73728; L_WKV=L_WQ+384*144; L_ONES=156672; L_SCR=157696
QA0,QA2,QB0,QB2=16,20,24,28
WO_RAW=200; WO_OUT=160

def pack_perm(a, n, raw, ob, sr=50):
    a(f"s_mov_b32 s{sr}, 0x05040100"); a(f"s_mov_b32 s{sr+1}, 0x07060302")
    for e in range(n):
        for r in range(4):
            sel=f"s{sr}" if (e&1)==0 else f"s{sr+1}"
            a(f"v_perm_b32 v{ob+4*e+r}, v{raw+4*(2*r+1)+(e>>1)}, v{raw+4*(2*r)+(e>>1)}, {sel}")

def wo_task_cond(a, Lskip):
    a(f"s_cmp_lg_u32 s{S_J}, 0"); a(f"s_cbranch_scc1 {Lskip}")
    a(f"s_cmp_ge_u32 s{S_RB}, 27"); a(f"s_cbranch_scc1 {Lskip}")

def wo_decode(a):
    a(f"s_lshl_b32 s43, s{S_RB}, 2"); a(f"s_add_u32 s43, s43, s{S_W}")
    a("s_mul_hi_u32 s44, s43, 0xe38e38f")
    a("s_mul_i32 s45, s44, 18"); a("s_sub_u32 s45, s43, s45")

def wo_load(a):
    L=a.newlabel("WOL")
    vm0=a.vm
    wo_task_cond(a,L)
    wo_decode(a)
    mk_srd(a,16,P_WO,D*D*2)
    a("v_and_b32 v5, 15, v1"); a("v_lshrrev_b32 v6, 4, v1")
    a("v_mul_u32_u24 v7, 12, v5"); a("s_mul_i32 s46, s44, 192"); a("v_add_u32 v7, s46, v7")
    a("v_lshrrev_b32 v8, 1, v6"); a("v_mul_u32_u24 v8, 18, v8"); a("v_and_b32 v9, 1, v6"); a("v_lshl_add_u32 v8, v9, 3, v8")
    a("v_mul_u32_u24 v9, 72, v6")
    a("s_cmp_lt_u32 s45, 16")
    a("s_cselect_b64 s[46:47], -1, 0")
    a("s_mul_i32 s48, s45, 36"); a("s_sub_u32 s49, s45, 16"); a("s_mul_i32 s49, s49, 288")
    a("s_cmp_lt_u32 s45, 16"); a("s_cselect_b32 s48, s48, s49")
    a("v_cndmask_b32 v8, v9, v8, s[46:47]")
    a("v_add_u32 v8, s48, v8")
    a(f"v_mul_u32_u24 v8, {ROWB}, v8"); a("v_add_u32 v8, v8, v7")
    for i in range(8):
        a("s_cmp_lt_u32 s45, 16")
        a(f"s_mov_b32 s48, {(18*(i>>1)+16+(i&1))*ROWB}")
        a(f"s_cmov_b32 s48, {i*ROWB}")
        a(f"buffer_load_dwordx3 v[{WO_RAW+4*i}:{WO_RAW+4*i+2}], v8, s[16:19], s48 offen")
    a.label(L)
    a.vm=vm0

def wo_store(a):
    L=a.newlabel("WOS")
    vm0=a.vm
    wo_task_cond(a,L)
    wo_decode(a)
    pack_perm(a,6,WO_RAW,WO_OUT)
    mk_srd(a,16,P_WS,WO_BYTES,WS_WO)
    a("v_lshlrev_b32 v5, 4, v1")
    a("s_mul_i32 s46, s44, 36"); a("s_add_u32 s46, s46, s45"); a("s_mul_i32 s46, s46, 3072")
    a(f"s_add_u32 s47, s46, {18*3072}")
    for e in range(6):
        a(f"buffer_store_dwordx4 v[{WO_OUT+4*e}:{WO_OUT+4*e+3}], v5, s[16:19], s{46+e//3} offen offset:{(e%3)*1024}"+SC)
    if os.environ.get("FFN2","1")=="1": wo_rowsum(a)
    a.label(L)
    a.vm=vm0

def wo_rowsum(a):
    T=184
    a("v_mov_b32 v232, 0x3f803f80")
    for i in range(8): a(f"v_mov_b32 v{T+i}, 0")
    for d in range(3):
        for i in range(8): a(f"v_dot2c_f32_bf16 v{T+i}, v{WO_RAW+4*i+d}, v232")
    for sh in (8,4,2,1):
        for i in range(8): a(f"v_add_f32_dpp v{T+i}, v{T+i}, v{T+i} row_ror:{sh} row_mask:0xf bank_mask:0xf")
    for j in range(4): a(f"v_cvt_pk_bf16_f32 v{T+8+j}, v{T+2*j}, v{T+2*j+1}")
    for j in range(4):
        a(f"v_lshlrev_b32 v233, 16, v{T+8+j}"); a(f"v_and_b32 v234, 0xffff0000, v{T+8+j}")
        a(f"v_sub_f32 v{T+2*j}, v{T+2*j}, v233"); a(f"v_sub_f32 v{T+2*j+1}, v{T+2*j+1}, v234")
    for j in range(4): a(f"v_cvt_pk_bf16_f32 v{T+12+j}, v{T+2*j}, v{T+2*j+1}")
    a("v_and_b32 v5, 15, v1"); a("v_lshrrev_b32 v6, 4, v1")
    a("v_cmp_eq_u32 vcc, 1, v5")
    for j in range(4): a(f"v_cndmask_b32 v{T+8+j}, v{T+8+j}, v{T+12+j}, vcc")
    a("v_cmp_gt_u32 vcc, 2, v5")
    for j in range(4): a(f"v_cndmask_b32 v{T+8+j}, 0, v{T+8+j}, vcc")
    a("s_lshl_b32 s46, s44, 1")
    a("v_add_u32 v7, s46, v5"); a("v_add_u32 v8, 10, v5"); a("v_cndmask_b32 v7, v8, v7, vcc")
    a("v_lshl_add_u32 v7, v6, 4, v7"); a("v_lshlrev_b32 v7, 4, v7")
    a("s_lshl_b32 s47, s45, 10"); a("v_add_u32 v7, s47, v7")
    a("s_cmp_eq_u32 s44, 0"); a("s_cselect_b32 s46, 6, 2")
    a("v_cmp_gt_u32 vcc, s46, v5"); a("v_mov_b32 v8, 0x7fffffff"); a("v_cndmask_b32 v7, v8, v7, vcc")
    mk_srd(a,20,P_WS,18*1024,WS_RS)
    a(f"buffer_store_dwordx4 v[{T+8}:{T+11}], v7, s[20:23], 0 offen"+SC)

def x_dma(a):
    mk_srd(a,8,P_X,MAT)
    a(f"s_lshl_b32 s34, s{S_RB}, 6")
    a(f"s_movk_i32 s36, {ROWB}")
    a("v_lshrrev_b32 v5, 3, v1")
    a("v_and_b32 v6, 7, v1")
    a("v_lshrrev_b32 v7, 1, v5")
    a("v_xor_b32 v8, v6, v7")
    a("v_xor_b32 v9, 4, v8")
    a(f"s_lshl_b32 s37, s{S_W}, 4"); a("s_add_u32 s37, s37, s34")
    a("v_add_u32 v5, s37, v5")
    a("v_lshlrev_b32 v8, 4, v8"); a("v_lshlrev_b32 v9, 4, v9")
    a("v_mad_u32_u24 v8, v5, s36, v8")
    a("v_add_u32 v5, 8, v5")
    a("v_mad_u32_u24 v9, v5, s36, v9")
    a(f"s_mul_i32 s45, s{S_W}, 18432")
    for g in range(2):
        for i in range(9):
            a("s_mov_b32 m0, s45")
            a(f"s_movk_i32 s46, {128*i}")
            a(f"buffer_load_dwordx4 v{8+g}, s[8:11], s46 offen lds")
            a("s_add_u32 s45, s45, 1024")

def wq_addr(a):
    mk_srd(a,12,P_WQ,D*D*2)
    a(f"s_mul_i32 s38, s{S_J}, 144")
    for n,(reg) in enumerate((126,127,128)):
        if n<2:
            a(f"s_lshl_b32 s39, s{S_W}, 7")
            if n: a("s_add_u32 s39, s39, 64")
            a(f"v_add_u32 v13, s39, v1")
        else: a("v_add_u32 v13, 512, v1")
        a("v_mul_u32_u24 v14, 7282, v13"); a("v_lshrrev_b32 v14, 16, v14")
        a("v_mul_u32_u24 v15, 9, v14"); a("v_sub_u32 v15, v13, v15")
        a(f"v_mul_u32_u24 v14, {ROWB}, v14"); a(f"v_lshl_add_u32 v{reg}, v15, 4, v14")
        a(f"v_add_u32 v{reg}, s38, v{reg}")
    a("v_subrev_u32 v127, 1024, v127")
    a(f"s_lshl_b32 s57, s{S_W}, 11"); a(f"s_add_u32 s57, s57, {L_WQ}")
    a("s_mov_b32 s56, 0")

def wq_ins(n):
    if n==0: return ["s_mov_b32 m0, s57", "s_add_u32 s57, s57, 9216", "buffer_load_dwordx4 v126, s[12:15], s56 offen lds"]
    return ["buffer_load_dwordx4 v127, s[12:15], s56 offen offset:1024 lds", f"s_add_u32 s56, s56, {64*ROWB}"]
def wq_cond(a, P):
    vm0=a.vm
    L=a.newlabel("WQ8")
    a(f"s_cmp_lg_u32 s{S_W}, {P&3}"); a(f"s_cbranch_scc1 {L}")
    a(f"s_mov_b32 m0, {L_WQ+(9*P+8)*1024}")
    a("s_nop 0")
    a(f"buffer_load_dwordx4 v128, s[12:15], s56 offen lds")
    a.label(L)
    a.vm=vm0
def wq_dma(a, P0, P1):
    for P in range(P0,P1):
        wq_cond(a,P)
        for n in range(2):
            for x in wq_ins(n): a(x)

def wkv_dma(a):
    a(f"s_cmp_eq_u32 s{S_J}, 6")
    a(f"s_cselect_b32 s16, s{P_WK}, s{P_WV}")
    a(f"s_cselect_b32 s17, s{P_WK+1}, s{P_WV+1}")
    a(f"s_mov_b32 s18, {D*DH*2}"); a("s_mov_b32 s19, 0x20000")
    for t in range(3):
        a(f"v_add_u32 v13, {64*t}, v1")
        a("v_mul_u32_u24 v14, 21846, v13"); a("v_lshrrev_b32 v14, 16, v14")
        a("v_mul_u32_u24 v15, 3, v14"); a("v_sub_u32 v15, v13, v15")
        a("v_mul_u32_u24 v14, 36, v14"); a(f"v_lshl_add_u32 v{116+t}, v15, 4, v14")
    vm0=a.vm
    for rep in range(3):
        L=a.newlabel("WKV")
        if rep==2:
            a(f"s_cmp_lg_u32 s{S_W}, 0"); a(f"s_cbranch_scc1 {L}")
        a(f"s_add_u32 s39, s{S_W}, {4*rep}")
        a("s_mul_i32 s40, s39, 2304")
        a("s_mul_i32 s39, s39, 3072"); a(f"s_add_u32 s39, s39, {L_WKV}")
        for t in range(3):
            a("s_mov_b32 m0, s39")
            a("s_nop 0")
            a(f"buffer_load_dwordx4 v{116+t}, s[16:19], s40 offen lds")
            a("s_add_u32 s39, s39, 1024")
        a.label(L)
    a.vm=vm0

def ones_init(a):
    a("v_mov_b32 v116, 0x3f803f80"); a("v_mov_b32 v117, 0x3f803f80"); a("v_mov_b32 v118, 0x3f803f80"); a("v_mov_b32 v119, 0x3f803f80")
    a("v_lshlrev_b32 v120, 4, v1"); a(f"v_add_u32 v120, {L_ONES}, v120")
    a("ds_write_b128 v120, v[116:119]")

def stats(a, rs, sq, out_mean, out_rstd, scale=None, n=D):
    a(f"s_mov_b32 s59, {f2u(1.0/n)}")
    a(f"v_mul_f32 v{out_mean}, s59, v{rs}")
    a(f"v_mul_f32 v{out_rstd}, s59, v{sq}")
    a(f"v_fma_f32 v{out_rstd}, -v{out_mean}, v{out_mean}, v{out_rstd}")
    a(f"v_max_f32 v{out_rstd}, 0, v{out_rstd}")
    a(f"v_add_f32 v{out_rstd}, {f2u(EPS)}, v{out_rstd}")
    a(f"v_rsq_f32 v{out_rstd}, v{out_rstd}")
    if scale is not None:
        a(f"s_mov_b32 s59, {f2u(scale)}")
        a(f"v_mul_f32 v{out_rstd}, s59, v{out_rstd}")

KVR=dict(AC0=32,AC1=36,CS0=40,CS1=44,ON=48,XF=[52,56,60],W0=[64,68,72],W1=[76,80,84],SSQ=88,XE=89,XO=90,VW0=91,VW1=92,VINC=93,SS=112,
         A1=130,A2=131,A3=132,A4=133)
def kv_setup(a):
    R=KVR; ON=R['ON']; XE,XO,VW0,VW1,VINC=R['XE'],R['XO'],R['VW0'],R['VW1'],R['VINC']
    a("v_and_b32 v3, 15, v1"); a("v_lshrrev_b32 v4, 4, v1")
    for i in range(4): a(f"v_mov_b32 v{ON+i}, 0x3f803f80")
    a("v_bfe_u32 v5, v1, 3, 1"); a(f"s_lshl_b32 s37, s{S_W}, 1"); a("v_add_u32 v5, s37, v5"); a("v_mul_u32_u24 v5, 9216, v5")
    a("v_and_b32 v6, 7, v1"); a("v_lshl_add_u32 v5, v6, 7, v5")
    a("v_lshrrev_b32 v6, 1, v3")
    a("v_xor_b32 v7, v6, v4"); a(f"v_lshl_add_u32 v{XE}, v7, 4, v5")
    a(f"v_xor_b32 v{XO}, 64, v{XE}")
    a("v_bfe_u32 v5, v1, 2, 2"); a("v_lshl_add_u32 v5, v4, 3, v5"); a("v_mul_u32_u24 v5, 48, v5")
    a("v_and_b32 v6, 3, v1"); a(f"v_lshl_add_u32 v{VW0}, v6, 3, v5"); a(f"v_add_u32 v{VW0}, {L_WKV}, v{VW0}")
    a(f"v_add_u32 v{VW1}, {L_WKV+32}, v5")
    a("v_cmp_eq_u32 vcc, 0, v6")
    a(f"v_mov_b32 v7, {L_ONES}"); a(f"v_cndmask_b32 v{VW1}, v7, v{VW1}, vcc")
    a(f"v_mov_b32 v7, 1536"); a(f"v_cndmask_b32 v{VINC}, 0, v7, vcc")
    mk_srd(a,20,P_WS,KV_BYTES,WS_KV)
    mk_srd(a,24,P_WS,1024,WS_NORM)
    mk_srd(a,16,P_WS,S*8,WS_STAT)
    a(f"s_lshr_b32 s37, s{S_RB}, 3"); a(f"s_mul_i32 s37, s37, {KV_STAGE}")
    a(f"s_and_b32 s38, s{S_RB}, 7")
    a("v_mov_b32 v15, 0x7fffffff")
    a("s_lshl_b32 s39, s38, 1"); a(f"s_lshr_b32 s40, s{S_W}, 1"); a("s_add_u32 s39, s39, s40")
    a(f"s_and_b32 s40, s{S_W}, 1"); a("s_lshl_b32 s40, s40, 4")
    a("v_add_u32 v13, s40, v3")
    a("v_and_b32 v14, 1, v4"); a("v_lshl_add_u32 v14, v14, 5, v13"); a("v_lshlrev_b32 v14, 4, v14")
    a("v_lshrrev_b32 v12, 1, v4"); a("v_lshl_add_u32 v14, v12, 3, v14")
    a("s_lshl_b32 s41, s39, 10"); a("s_add_u32 s41, s41, s37"); a(f"v_add_u32 v134, s41, v14")
    a("v_lshlrev_b32 v13, 2, v13"); a("s_lshl_b32 s41, s39, 7"); a("s_add_u32 s41, s41, s37"); a(f"s_add_u32 s41, s41, {KV_K2}"); a("v_add_u32 v13, s41, v13")
    a("v_cmp_eq_u32 vcc, 0, v4"); a("v_cndmask_b32 v135, v15, v13, vcc")
    a(f"s_lshl_b32 s39, s{S_RB}, 6"); a(f"s_lshl_b32 s40, s{S_W}, 4"); a("s_add_u32 s39, s39, s40")
    a("v_add_u32 v13, s39, v3"); a("v_lshlrev_b32 v13, 3, v13"); a("v_cndmask_b32 v136, v15, v13, vcc")
    a("s_lshl_b32 s39, s38, 2"); a(f"s_add_u32 s39, s39, s{S_W}"); a("s_mul_i32 s39, s39, 608"); a("s_add_u32 s39, s39, s37"); a(f"s_add_u32 s39, s39, {KV_V}")
    a("v_and_b32 v14, 1, v4"); a("v_mul_u32_u24 v14, 304, v14"); a("v_lshl_add_u32 v14, v3, 4, v14")
    a("v_lshl_add_u32 v14, v12, 3, v14"); a("v_add_u32 v137, s39, v14")
    a("v_add_u32 v14, 256, v137"); a("v_cmp_gt_u32 vcc, 3, v3"); a("v_cndmask_b32 v138, v15, v14, vcc")
    a(f"s_lshl_b32 s39, s{S_RB}, 2"); a(f"s_add_u32 s39, s39, s{S_W}"); a("s_lshl_b32 s39, s39, 2")
    a("v_mov_b32 v14, s39"); a("v_cmp_eq_u32 vcc, 0, v1"); a("v_cndmask_b32 v139, v15, v14, vcc")
    a(f"s_lshl_b32 s39, s{S_W}, 6"); a(f"s_add_u32 s39, s39, {L_SCR}")
    a("v_lshl_add_u32 v140, v3, 2, s39"); a("v_lshl_add_u32 v141, v4, 4, s39")

def kv_compute(a, isK):
    R=KVR
    AC0,AC1,CS0,CS1,ON=R['AC0'],R['AC1'],R['CS0'],R['CS1'],R['ON']
    XF,W0,W1,SSQ,SS=R['XF'],R['W0'],R['W1'],R['SSQ'],R['SS']
    XE,XO,VW0,VW1,VINC=R['XE'],R['XO'],R['VW0'],R['VW1'],R['VINC']
    def rd_list(ks):
        b=ks%3
        return [f"ds_read_b128 v[{XF[b]}:{XF[b]+3}], v{XE if ks%2==0 else XO} offset:{(ks>>1)*1024}",
                f"ds_read_b64_tr_b16 v[{W0[b]}:{W0[b]+1}], v{VW0} offset:{ks*1536}",
                f"ds_read_b64_tr_b16 v[{W0[b]+2}:{W0[b]+3}], v{VW0} offset:{ks*1536+192}",
                f"ds_read_b64_tr_b16 v[{W1[b]}:{W1[b]+1}], v{VW1}",
                f"ds_read_b64_tr_b16 v[{W1[b]+2}:{W1[b]+3}], v{VW1} offset:192",
                f"v_add_u32 v{VW1}, v{VW1}, v{VINC}"]
    if isK: xstamp(a,'k')
    tok={}
    for ks in (0,1):
        for x in rd_list(ks): a(x)
        tok[ks]=a.ltok()
    def mm(d,w,x,first):
        c="0" if first else f"v[{d}:{d+3}]"
        A,B=(w,x) if isK else (x,w)
        a(f"v_mfma_f32_16x16x32_bf16 v[{d}:{d+3}], v[{A}:{A+3}], v[{B}:{B+3}], {c}")
    for ks in range(18):
        b=ks%3
        a.wait_lg(tok[ks])
        nxt=rd_list(ks+2) if ks+2<18 else []
        ms=[(AC0,W0[b],XF[b]),(AC1,W1[b],XF[b]),(SS,XF[b],XF[b]),(CS0,W0[b],ON),(CS1,W1[b],ON)]
        fill=[nxt[0:1],nxt[1:3],nxt[3:5],nxt[5:6],[]]
        for i,(d,w,x) in enumerate(ms):
            mm(d,w,x,ks==0)
            for ins in fill[i]: a(ins)
        if nxt: tok[ks+2]=a.ltok()
        if ks<8:
            if ks%2==0: wq_cond(a,ks//2)
            for x in wq_ins(ks%2): a(x)
    if isK: xstamp(a,'k')
    a("v_and_b32 v5, 3, v1")
    a(f"v_mov_b32 v{SSQ}, v{SS}")
    for r in range(1,4):
        a(f"v_cmp_eq_u32 vcc, {r}, v5"); a(f"v_cndmask_b32 v{SSQ}, v{SSQ}, v{SS+r}, vcc")
    a("v_lshrrev_b32 v5, 2, v3"); a("v_cmp_eq_u32 vcc, v5, v4"); a(f"v_cndmask_b32 v{SSQ}, 0, v{SSQ}, vcc")
    xsum16(a,SSQ,5); xsum32(a,SSQ,5)
    if isK:
        a(f"v_mov_b32 v5, v{AC1}"); a(f"v_mov_b32 v6, v{AC1}"); a("v_permlane32_swap_b32 v5, v6")
        stats(a,6,SSQ,98,99)
        a("buffer_store_dwordx2 v[98:99], v136, s[16:19], 0 offen"+SC)
        for r in range(4):
            a(f"v_fma_f32 v{AC0+r}, -v98, v{CS0+r}, v{AC0+r}")
        for r in range(2):
            a(f"v_fma_f32 v{AC1+r}, -v98, v{CS1+r}, v{AC1+r}")
        for r in range(4): a(f"v_mul_f32 v{AC0+r}, v99, v{AC0+r}")
        for r in range(2): a(f"v_mul_f32 v{AC1+r}, v99, v{AC1+r}")
        a(f"v_cvt_pk_bf16_f32 v10, v{AC0}, v{AC0+1}"); a(f"v_cvt_pk_bf16_f32 v11, v{AC0+2}, v{AC0+3}")
        a(f"v_cvt_pk_bf16_f32 v12, v{AC1}, v{AC1+1}")
        a("buffer_store_dwordx2 v[10:11], v134, s[20:23], 0 offen"+SC)
        a("buffer_store_dword v12, v135, s[20:23], 0 offen"+SC)
        a("v_cmp_eq_u32 vcc, 0, v4")
        a(f"v_mul_f32 v9, v{AC1}, v{AC1}"); a(f"v_fma_f32 v9, v{AC1+1}, v{AC1+1}, v9"); a("v_cndmask_b32 v9, 0, v9, vcc")
        for r in range(4): a(f"v_fma_f32 v9, v{AC0+r}, v{AC0+r}, v9")
        xsum16(a,9,5); xsum32(a,9,5)
        for sh in (8,4,2,1):
            a(f"v_mov_b32_dpp v5, v9 row_ror:{sh} row_mask:0xf bank_mask:0xf"); a("v_max_f32 v9, v9, v5")
        noff=0
    else:
        a(f"ds_write_b32 v140, v{SSQ}")
        a("v_cmp_gt_u32 vcc, 4, v3")
        for r in range(4):
            a(f"v_mov_b32_dpp v5, v{AC1+r} row_ror:8 row_mask:0xf bank_mask:0xf")
            a(f"v_cndmask_b32 v{94+r}, v{AC1+r}, v5, vcc")
        a("s_waitcnt lgkmcnt(0)"); a("ds_read_b128 v[100:103], v141"); a("s_waitcnt lgkmcnt(0)")
        for r in range(4):
            stats(a,94+r,100+r,104+r,108+r)
        for r in range(4):
            a(f"v_fma_f32 v{AC0+r}, -v{104+r}, v{CS0+r}, v{AC0+r}"); a(f"v_fma_f32 v{AC1+r}, -v{104+r}, v{CS1+r}, v{AC1+r}")
        for r in range(4):
            a(f"v_mul_f32 v{AC0+r}, v{108+r}, v{AC0+r}"); a(f"v_mul_f32 v{AC1+r}, v{108+r}, v{AC1+r}")
        a("v_cmp_eq_u32 vcc, 2, v3")
        for r in range(4): a(f"v_cndmask_b32 v{AC1+r}, v{AC1+r}, 1.0, vcc")
        a(f"v_cvt_pk_bf16_f32 v10, v{AC0}, v{AC0+1}"); a(f"v_cvt_pk_bf16_f32 v11, v{AC0+2}, v{AC0+3}")
        a(f"v_cvt_pk_bf16_f32 v12, v{AC1}, v{AC1+1}"); a(f"v_cvt_pk_bf16_f32 v13, v{AC1+2}, v{AC1+3}")
        a("buffer_store_dwordx2 v[10:11], v137, s[20:23], 0 offen"+SC)
        a("buffer_store_dwordx2 v[12:13], v138, s[20:23], 0 offen"+SC)
        a(f"v_max3_f32 v9, |v{AC0}|, |v{AC0+1}|, |v{AC0+2}|"); a(f"v_max_f32 v9, |v{AC0+3}|, v9")
        a(f"v_max3_f32 v5, |v{AC1}|, |v{AC1+1}|, |v{AC1+2}|"); a(f"v_max_f32 v5, |v{AC1+3}|, v5")
        a("v_cmp_gt_u32 vcc, 2, v3"); a("v_cndmask_b32 v5, 0, v5, vcc"); a("v_max_f32 v9, v9, v5")
        xmax16(a,9,5); xmax32(a,9,5)
        for sh in (8,4,2,1):
            a(f"v_mov_b32_dpp v5, v9 row_ror:{sh} row_mask:0xf bank_mask:0xf"); a("v_max_f32 v9, v9, v5")
        noff=512
    a(f"buffer_store_dword v9, v139, s[24:27], 0 offen offset:{noff}"+SC)

QAC=[32,48]; QCS=84
def q_proj(a, mid_signal):
    AC=QAC; CSD=64; SEL=68
    AF=[72,76,80]; BF=[[96,100],[104,108],[112,116]]
    XA=[120,121,122,123]; VA=[124,125]
    SIGSTEP=10
    a("v_and_b32 v3, 15, v1"); a("v_lshrrev_b32 v4, 4, v1"); a("v_and_b32 v5, 1, v4")
    a("v_cmp_eq_u32 vcc, v3, v5"); a("v_mov_b32 v6, 0x3f803f80")
    for i in range(4): a(f"v_cndmask_b32 v{SEL+i}, 0, v6, vcc")
    a("v_and_b32 v5, 31, v1"); a("v_lshrrev_b32 v6, 5, v1")
    a("v_lshrrev_b32 v7, 3, v5"); a("v_mul_u32_u24 v7, 9216, v7"); a("v_and_b32 v8, 7, v1"); a("v_lshl_add_u32 v7, v8, 7, v7")
    a("v_bfe_u32 v8, v5, 1, 3")
    a("v_xor_b32 v8, v8, v6")
    for i in range(4):
        a(f"v_xor_b32 v9, {2*i}, v8"); a(f"v_lshl_add_u32 v{XA[i]}, v9, 4, v7")
    a("v_bfe_u32 v7, v1, 2, 2"); a("v_lshl_add_u32 v7, v6, 3, v7"); a("v_mul_u32_u24 v7, 144, v7")
    a("v_and_b32 v8, 3, v1"); a("v_lshl_add_u32 v7, v8, 3, v7")
    a("v_bfe_u32 v9, v1, 4, 1"); a("v_lshl_add_u32 v7, v9, 5, v7")
    a(f"s_mul_i32 s37, s{S_W}, 36"); a(f"s_and_b32 s38, s{S_W}, 1"); a("s_lshl_b32 s38, s38, 2"); a("s_sub_u32 s37, s37, s38"); a(f"s_add_u32 s37, s37, {L_WQ}")
    a(f"v_add_u32 v{VA[0]}, s37, v7")
    a(f"v_add_u32 v{VA[1]}, {18*2304}, v{VA[0]}")
    def rd_list(ks):
        b=ks%3; va=VA[ks//18]; off=(ks%18)*2304
        r=[f"ds_read_b64_tr_b16 v[{AF[b]}:{AF[b]+1}], v{va} offset:{off}",
           f"ds_read_b64_tr_b16 v[{AF[b]+2}:{AF[b]+3}], v{va} offset:{off+576}"]
        for mt in range(2):
            r.append(f"ds_read_b128 v[{BF[b][mt]}:{BF[b][mt]+3}], v{XA[ks&3]} offset:{(ks>>2)*1024+mt*36864}")
        return r
    tok={}
    for ks in (0,1):
        for x in rd_list(ks): a(x)
        tok[ks]=a.ltok()
    xstamp(a,"q")
    ptok={}
    loop0=a.vm
    for ks in range(36):
        b=ks%3
        if ks in (4,10,18,24,30): xstamp(a,"q")
        if ks%4==2 and ks//4+1<=8:
            X=ks//4+1
            if X<=3: n=a.vm-loop0+2*(3-X)
            else: n=a.vm-ptok[X]
            if X<=2:
                L1=a.newlabel("QW"); L2=a.newlabel("QW")
                a(f"s_cmp_ge_u32 s{S_J}, 6"); a(f"s_cbranch_scc1 {L1}")
                a(f"s_waitcnt vmcnt({n})"); a(f"s_branch {L2}")
                a.label(L1); a(f"s_waitcnt vmcnt({n+3})"); a.label(L2)
            else: a(f"s_waitcnt vmcnt({n})")
            a("s_barrier")
            if ks==SIGSTEP: mid_signal()
        a.wait_lg(tok[ks])
        nxt=rd_list(ks+2) if ks+2<36 else []
        dma=[]
        Pd=4+(ks-2)//4
        if ks>=2 and Pd<=8 and (ks-2)%4<2: dma=wq_ins((ks-2)%4)
        for mt in range(2):
            c="0" if ks==0 else f"v[{AC[mt]}:{AC[mt]+15}]"
            a(f"v_mfma_f32_32x32x16_bf16 v[{AC[mt]}:{AC[mt]+15}], v[{AF[b]}:{AF[b]+3}], v[{BF[b][mt]}:{BF[b][mt]+3}], {c}")
            for x in nxt[2*mt:2*mt+2]: a(x)
        if nxt: tok[ks+2]=a.ltok()
        c="0" if ks==0 else f"v[{CSD}:{CSD+3}]"
        a(f"v_mfma_f32_16x16x32_bf16 v[{CSD}:{CSD+3}], v[{AF[b]}:{AF[b]+3}], v[{SEL}:{SEL+3}], {c}")
        if ks>=2 and Pd<=8 and (ks-2)%4==0: wq_cond(a,Pd)
        for x in dma: a(x)
        if dma and (ks-2)%4==1: ptok[Pd]=a.vtok()
    xstamp(a,"q")
    a(f"s_lshl_b32 s37, s{S_W}, 7"); a(f"s_add_u32 s37, s37, {L_SCR+2048}")
    a("v_lshlrev_b32 v7, 6, v3"); a("v_lshl_add_u32 v7, v4, 4, v7"); a("v_add_u32 v7, s37, v7")
    a("v_cmp_gt_u32 vcc, 2, v3"); a("s_and_saveexec_b64 s[40:41], vcc")
    a(f"ds_write_b128 v7, v[{CSD}:{CSD+3}]")
    a("s_mov_b64 exec, s[40:41]")
    a("v_lshrrev_b32 v6, 5, v1"); a("v_lshl_add_u32 v6, v6, 4, s37")
    a("s_waitcnt lgkmcnt(0)")
    for q in range(3): a(f"ds_read_b128 v[{QCS+4*q}:{QCS+4*q+3}], v6 offset:{q*32}")
    a("s_waitcnt lgkmcnt(0)")
    a("s_barrier")

def q_stats_load(a):
    a(f"s_add_u32 s4, s{P_WS}, {WS_STAT}"); a(f"s_addc_u32 s5, s{P_WS+1}, 0"); a(f"s_mov_b32 s6, {S*8}"); a("s_mov_b32 s7, 0x20000")
    a(f"s_lshl_b32 s38, s{S_RB}, 9"); a("v_and_b32 v5, 31, v1"); a("v_lshlrev_b32 v5, 3, v5"); a("v_add_u32 v5, s38, v5")
    a("buffer_load_dwordx2 v[96:97], v5, s[4:7], 0 offen"+SC)
    a("buffer_load_dwordx2 v[98:99], v5, s[4:7], 0 offen offset:256"+SC)

def q_finalize(a):
    a("v_cmp_gt_u32 s[46:47], 32, v1")
    a(f"s_and_b32 s38, s{S_W}, 1")
    a(f"s_mov_b32 s59, {f2u(QSCALE)}")
    for mt in range(2):
        A=QAC[mt]; Q0=(QA0,QB0)[mt]; Q2=(QA2,QB2)[mt]; M=96+2*mt; R=97+2*mt
        a(f"v_mul_f32 v{R}, s59, v{R}")
        for r in range(12):
            a(f"v_fma_f32 v{A+r}, -v{M}, v{QCS+r}, v{A+r}")
        for r in range(12):
            a(f"v_mul_f32 v{A+r}, v{R}, v{A+r}")
        for p in range(6): a(f"v_cvt_pk_bf16_f32 v{100+p}, v{A+2*p}, v{A+2*p+1}")
        Lo=a.newlabel("QODD"); Le=a.newlabel("QEND")
        a("s_cmp_lg_u32 s38, 0"); a(f"s_cbranch_scc1 {Lo}")
        for p in range(4): a(f"v_mov_b32 v{Q0+p}, v{100+p}")
        a(f"v_cndmask_b32 v{Q2}, 0, v104, s[46:47]")
        a(f"s_branch {Le}")
        a.label(Lo)
        a(f"v_mov_b32 v{Q0}, v101"); a(f"v_mov_b32 v{Q0+2}, v103")
        a("v_mov_b32 v106, v102")
        a("v_permlane32_swap_b32 v100, v102")
        a(f"v_cndmask_b32 v{Q0+1}, v100, v102, s[46:47]")
        a("v_permlane32_swap_b32 v106, v104")
        a(f"v_cndmask_b32 v{Q0+3}, v106, v104, s[46:47]")
        a(f"v_cndmask_b32 v{Q2}, 0, v105, s[46:47]")
        a.label(Le)
        a(f"v_mov_b32 v{Q2+1}, 0")
    if DBG:
        mk_srd(a,4,P_WS,256*4*4096,WS_END+0x100000)
        a(f"s_lshl_b32 s38, s{S_RB}, 3"); a(f"s_add_u32 s38, s38, s{S_J}"); a("s_lshl_b32 s38, s38, 2"); a(f"s_add_u32 s38, s38, s{S_W}"); a("s_lshl_b32 s38, s38, 12")
        a("v_lshlrev_b32 v5, 2, v1"); a("v_add_u32 v5, s38, v5")
        for i,r in enumerate(list(range(QA0,QA0+5))+list(range(QB0,QB0+5))):
            a(f"buffer_store_dword v{r}, v5, s[4:7], 0 offen offset:{i*256}")
```

```python
from asmlib import *
import os, struct
S=2048; D=576; H=32; DH=18; F=4608
ROWB=D*2
MAT=S*ROWB
P_X,P_WQ,P_WK,P_WV,P_WO,P_BX,P_WG,P_WU,P_WD,P_OUT,P_DBG,P_WS=[64+2*i for i in range(12)]
S_RB,S_J,S_W,S_TAG=60,61,62,63
WS_FLAGS=0
FL_E=0
FL_KV=0x1000
FL_WO=0x3000
FL_G=0x4000
FL_PK=0x10000
FL_T=0x14000
FL_P=0x18000
FL_BYTES=0x48000
WS_Q=0x48000
WS_KV=WS_Q+MAT
KV_STAGE=37888; KV_K2=16384; KV_V=18432; KV_BYTES=4*KV_STAGE
WS_NORM=WS_KV+0x28000
WS_STAT=WS_NORM+0x1000
WS_O=WS_STAT+0x4000
WS_H=WS_O+MAT
WS_HC=WS_H+MAT
WS_RS=WS_HC+MAT
WS_SSQ=WS_RS+0x8000
WS_WO=WS_SSQ+S*64
WO_BYTES=6*2*18*3*1024
WS_W=WS_WO+WO_BYTES
WSTREAM=486*1024
WS_PART=WS_W+32*WSTREAM
WS_T=WS_PART+8*MAT
WS_END=WS_T+256*36864
QSCALE=(DH**-0.5)*1.4426950408889634
EPS=1e-5
SC=os.environ.get("SCX"," sc1")
PROF=os.environ.get("PROF")
DBG=os.environ.get("DBG")
WS_PROF=WS_END+0x10000

def f2u(x): return struct.unpack("<I",struct.pack("<f",x))[0]

def mk_srd(a, srd, ptr, nbytes, off=0):
    if off:
        a(f"s_add_u32 s{srd}, s{ptr}, {off}")
        a(f"s_addc_u32 s{srd+1}, s{ptr+1}, 0")
    else:
        a(f"s_mov_b32 s{srd}, s{ptr}")
        a(f"s_mov_b32 s{srd+1}, s{ptr+1}")
    a(f"s_mov_b32 s{srd+2}, {nbytes}")
    a(f"s_mov_b32 s{srd+3}, 0x20000")

def xop16(a, op, v, t):
    a(f"v_mov_b32 v{t}, v{v}"); a(f"v_permlane16_swap_b32 v{v}, v{t}"); a(f"{op} v{v}, v{v}, v{t}")
def xop32(a, op, v, t):
    a(f"v_mov_b32 v{t}, v{v}"); a(f"v_permlane32_swap_b32 v{v}, v{t}"); a(f"{op} v{v}, v{v}, v{t}")
def xsum16(a,v,t): xop16(a,"v_add_f32",v,t)
def xsum32(a,v,t): xop32(a,"v_add_f32",v,t)
def xmax16(a,v,t): xop16(a,"v_max_f32",v,t)
def xmax32(a,v,t): xop32(a,"v_max_f32",v,t)

NSTAMP=14
XS=os.environ.get("XS","")
_xs=[1]
def xstamp(a, grp):
    if not PROF or XS!=grp: return
    i=_xs[0]
    while i in (9,12,13): i+=1
    if i>=NSTAMP-1: return
    _xs[0]=i+1
    stamp(a,i,True)
def stamp(a, i, force=False):
    if not PROF: return
    if XS and not force and i not in (0,13): return
    assert i<NSTAMP
    a("s_memrealtime s[4:5]" if os.environ.get("RT") else "s_memtime s[4:5]")
    a("s_waitcnt lgkmcnt(0)")
    a(f"s_mov_b32 s{88+i}, s4")
def stamp_rt(a, i):
    if not PROF: return
    a("s_memrealtime s[4:5]")
    a("s_waitcnt lgkmcnt(0)")
    a(f"s_mov_b32 s{88+i}, s4")
def stamp_flush(a):
    if not PROF: return
    mk_srd(a,28,P_WS,262144,WS_PROF)
    a("v_lshrrev_b32 v1, 6, v0")
    a("s_lshl_b32 s4, s2, 2")
    a("v_add_u32 v1, s4, v1")
    a("v_lshlrev_b32 v1, 6, v1")
    for i in range(NSTAMP):
        a(f"v_mov_b32 v2, s{88+i}")
        a(f"buffer_store_dword v2, v1, s[28:31], 0 offen offset:{4*i}")

def flag_srd(a): mk_srd(a,28,P_WS,FL_BYTES,WS_FLAGS)

def flag_store(a, addr_s):
    L=a.newlabel("SIG")
    vm0=a.vm
    a(f"s_cmp_lg_u32 s{S_W}, 0")
    a(f"s_cbranch_scc1 {L}")
    flag_srd(a)
    a(f"v_mov_b32 v250, s{addr_s}")
    a(f"v_mov_b32 v251, s{S_TAG}")
    a("s_mov_b64 exec, 1")
    a("buffer_store_dword v251, v250, s[28:31], 0 offen sc1")
    a("s_mov_b64 exec, -1")
    a.label(L)
    a.vm=vm0

def signal(a, addr_s, vm=0):
    a(f"s_waitcnt vmcnt({vm}) lgkmcnt(0)")
    a("s_barrier")
    flag_store(a, addr_s)

def poll(a, vaddrs, barrier=True, sleep=1):
    L=a.newlabel("POL"); E=a.newlabel("POLE")
    vm0=a.vm
    a(f"s_cmp_lg_u32 s{S_W}, 0")
    a(f"s_cbranch_scc1 {E}")
    flag_srd(a)
    a("s_mov_b32 s3, 0")
    a.label(L)
    for i,v in enumerate(vaddrs):
        a(f"buffer_load_dword v{244+i}, v{v}, s[28:31], 0 offen sc1")
    a("s_waitcnt vmcnt(0)")
    a(f"v_xor_b32 v244, s{S_TAG}, v244")
    for i in range(1,len(vaddrs)):
        a(f"v_xor_b32 v{244+i}, s{S_TAG}, v{244+i}")
        a(f"v_or_b32 v244, v244, v{244+i}")
    a("v_cmp_ne_u32 vcc, 0, v244")
    a("s_add_u32 s3, s3, 1")
    a("s_cmp_gt_u32 s3, 0x40000")
    a(f"s_cbranch_scc1 {E}")
    a(f"s_cbranch_vccnz {L}")
    a.label(E)
    if barrier: a("s_barrier")
    a.vm=vm0

def gflag_addr(a, dst, base):
    a(f"s_lshl_b32 s{dst}, s{S_RB}, 3")
    a(f"s_add_u32 s{dst}, s{dst}, s{S_J}")
    a(f"s_lshl_b32 s{dst}, s{dst}, 6")
    a(f"s_add_u32 s{dst}, s{dst}, {base}")
def gpoll_addr(a, v, base, n):
    a(f"v_and_b32 v{v}, 7, v0")
    if n<8: a(f"v_min_u32 v{v}, {n-1}, v{v}")
    a(f"s_lshl_b32 s3, s{S_RB}, 3")
    a(f"v_add_u32 v{v}, s3, v{v}")
    a(f"v_lshlrev_b32 v{v}, 6, v{v}")
    a(f"v_add_u32 v{v}, {base}, v{v}")
```

```python
import sys
from ncommon import *
from n_p1 import *
from n_attn import *
from n_ffn4 import *
NAME="sequential_preLN__grouped_kv_mqa__glu_gated_bilinear__prompt"
HEADER=open("cdna_kernels/"+NAME+".s.ref").read().split("; Override launch")[0]
LDS=163840

def mega():
    a=Asm()
    a("s_cmp_ge_u32 s2, 256")
    a("s_cbranch_scc1 MEGA_END")
    a("s_load_dwordx16 s[64:79], s[0:1], 0")
    a("s_load_dwordx8 s[80:87], s[0:1], 64")
    a("v_lshrrev_b32 v2, 6, v0")
    a(f"v_readfirstlane_b32 s{S_W}, v2")
    MAP=os.environ.get("MAP","8")
    a("s_and_b32 s3, s2, 7")
    a("s_lshr_b32 s6, s2, 3")
    if MAP=="8":
        a("s_lshr_b32 s4, s3, 1"); a("s_and_b32 s5, s3, 1"); a("s_and_b32 s7, s6, 7"); a("s_lshl_b32 s4, s4, 3"); a(f"s_add_u32 s{S_RB}, s4, s7")
        a("s_lshr_b32 s6, s6, 3"); a("s_lshl_b32 s5, s5, 2"); a(f"s_add_u32 s{S_J}, s5, s6")
    elif MAP=="16":
        a("s_lshr_b32 s4, s3, 2"); a("s_and_b32 s5, s3, 3"); a("s_and_b32 s7, s6, 15"); a("s_lshl_b32 s4, s4, 4"); a(f"s_add_u32 s{S_RB}, s4, s7")
        a("s_lshr_b32 s6, s6, 4"); a("s_lshl_b32 s5, s5, 1"); a(f"s_add_u32 s{S_J}, s5, s6")
    elif MAP=="32":
        a(f"s_mov_b32 s{S_RB}, s6"); a(f"s_mov_b32 s{S_J}, s3")
    elif MAP=="4":
        a("s_lshl_b32 s4, s3, 2"); a("s_and_b32 s7, s6, 3"); a(f"s_add_u32 s{S_RB}, s4, s7"); a(f"s_lshr_b32 s{S_J}, s6, 2")
    a("v_and_b32 v1, 63, v0")
    if os.environ.get("CPF","1")=="1":
        a("s_getpc_b64 s[8:9]")
        a.label("PCREF")
        a("s_lshr_b32 s10, s2, 3"); a("s_lshl_b32 s10, s10, 2"); a(f"s_add_u32 s10, s10, s{S_W}"); a("s_lshl_b32 s10, s10, 10")
        a("v_lshl_add_u32 v250, v1, 4, s10")
        a("v_min_u32 v250, MEGA_END-PCREF-16, v250")
        a("v_mov_b32 v251, s9")
        a("v_add_co_u32 v250, vcc, s8, v250")
        a("v_addc_co_u32 v251, vcc, 0, v251, vcc")
        a("global_load_dwordx4 v[252:255], v[250:251], off")
    a("s_waitcnt lgkmcnt(0)")
    a(f"s_load_dword s{S_TAG}, s[{P_WS}:{P_WS+1}], {WS_FLAGS+FL_E}")
    stamp(a,0); stamp_rt(a,12)
    wo_load(a)
    xstamp(a,"i")
    x_dma(a)
    xstamp(a,"i")
    a(f"s_cmp_lt_u32 s{S_J}, 6"); a("s_cbranch_scc1 P1_NOKVD")
    wkv_dma(a)
    a.label("P1_NOKVD")
    wq_addr(a)
    ones_init(a)
    a(f"s_cmp_ge_u32 s{S_J}, 6"); a("s_cbranch_scc1 P1_PROD")
    xstamp(a,"i")
    wq_dma(a,0,4)
    xstamp(a,"i")
    pack_setup(a)
    a("s_waitcnt lgkmcnt(0)")
    a(f"s_mul_i32 s{S_TAG}, s{S_TAG}, 0x9e3779b1"); a(f"s_add_u32 s{S_TAG}, s{S_TAG}, 0x7f4a7c15")
    a("s_waitcnt vmcnt(6)")
    xstamp(a,"i")
    a("s_barrier")
    a("s_branch P1_Q")
    a.label("P1_PROD")
    kv_setup(a)
    pack_setup(a)
    a("s_waitcnt lgkmcnt(0)")
    a(f"s_mul_i32 s{S_TAG}, s{S_TAG}, 0x9e3779b1"); a(f"s_add_u32 s{S_TAG}, s{S_TAG}, 0x7f4a7c15")
    xstamp(a,'k')
    a("s_waitcnt vmcnt(0)")
    xstamp(a,'k')
    a("s_barrier")
    xstamp(a,'k')
    a(f"s_cmp_eq_u32 s{S_J}, 7"); a("s_cbranch_scc1 P1_V")
    kv_compute(a,True)
    a("s_branch P1_KVD")
    a.label("P1_V")
    kv_compute(a,False)
    a.label("P1_KVD")
    xstamp(a,'k')
    a("s_waitcnt vmcnt(7) lgkmcnt(0)")
    a("s_barrier")
    a.label("P1_Q")
    stamp(a,1)
    def mid_signal():
        L=a.newlabel("MS"); vm0=a.vm
        a(f"s_cmp_lt_u32 s{S_J}, 6"); a(f"s_cbranch_scc1 {L}")
        a(f"s_lshl_b32 s6, s{S_RB}, 1"); a(f"s_add_u32 s6, s6, s{S_J}"); a("s_sub_u32 s6, s6, 6"); a("s_lshl_b32 s6, s6, 7"); a(f"s_add_u32 s6, s6, {FL_KV}")
        flag_store(a,6)
        stamp(a,8)
        a.label(L); a.vm=vm0
    q_proj(a,mid_signal)
    stamp(a,2)
    wo_store(a)
    L=a.newlabel("WOF")
    wo_task_cond(a,L)
    a(f"s_lshl_b32 s6, s{S_RB}, 6"); a(f"s_add_u32 s6, s6, {FL_WO}")
    signal(a,6)
    a.label(L)
    attn_init(a)
    a("v_lshlrev_b32 v9, 7, v1"); a(f"v_add_u32 v9, {FL_KV}, v9")
    poll(a,[9])
    stamp(a,3)
    st={}
    xstamp(a,'a')
    attn_issue(a,st,q_stats_load)
    xstamp(a,'a')
    def b3_pre():
        Lok=a.newlabel("WOK"); Lp=a.newlabel("WOP"); vm0=a.vm
        a("s_mov_b32 s3, 0")
        a.label(Lp)
        a(f"v_cmp_ne_u32 vcc, s{S_TAG}, v{WOFLAG}")
        a(f"s_cbranch_vccz {Lok}")
        a(f"buffer_load_dword v{WOFLAG}, v{WOFLAG+1}, s[28:31], 0 offen sc1")
        a("s_waitcnt vmcnt(0)")
        a("s_add_u32 s3, s3, 1"); a("s_cmp_lt_u32 s3, 0x40000"); a(f"s_cbranch_scc1 {Lp}")
        a.label(Lok); a.vm=vm0
        wo_frag_setup(a)
    attn_main(a,st,pack_b0_groups(st),pack_mid_groups(),wo_frag_groups(a),b3_pre,q_finalize)
    stamp(a,4)
    xstamp(a,'h')
    attn_epilogue(a)
    xstamp(a,'h')
    gflag_addr(a,6,FL_G)
    signal(a,6)
    xstamp(a,'h')
    a(f"s_cmp_ge_u32 s{S_J}, 6")
    a("s_cbranch_scc1 P3_SKIP")
    p3_pre(a)
    if os.environ.get("B2ALL"):
        for i in range(4):
            a(f"v_and_b32 v{12+i}, 63, v0")
            a(f"v_add_u32 v{12+i}, {64*i}, v{12+i}"); a(f"v_lshlrev_b32 v{12+i}, 6, v{12+i}"); a(f"v_add_u32 v{12+i}, {FL_G}, v{12+i}")
        poll(a,[12,13,14,15])
    else:
        gpoll_addr(a,12,FL_G,8)
        poll(a,[12])
    xstamp(a,'h')
    stamp(a,5)
    ffn=FFN(a)
    p3(a,ffn)
    xstamp(a,'h')
    gflag_addr(a,6,FL_G+0x4000)
    signal(a,6,vm=a.vm-ffn.stok)
    xstamp(a,'h')
    ffn.prefetch(PRE-ffn.n)
    vm_merge=a.vm
    a("s_branch P3_DONE")
    a.label("P3_SKIP")
    for i in range(4):
        a(f"v_and_b32 v{12+i}, 63, v0")
        a(f"v_add_u32 v{12+i}, {64*i}, v{12+i}"); a(f"v_lshlrev_b32 v{12+i}, 6, v{12+i}"); a(f"v_add_u32 v{12+i}, {FL_G}, v{12+i}")
    poll(a,[12,13,14,15])
    f2=FFN(a); f2.ring_setup(); f2.prefetch(PRE)
    pack_third(a)
    gflag_addr(a,6,FL_PK)
    signal(a,6)
    stamp(a,5)
    a.label("P3_DONE")
    a.vm=vm_merge
    ffn_role(a,S_RB,S_J)
    a("v_and_b32 v11, 7, v0"); a("v_min_u32 v11, 5, v11"); a("v_bfe_u32 v12, v0, 3, 1"); a("v_lshl_add_u32 v11, v12, 3, v11")
    a(f"s_and_b32 s3, s{S_RB}, 30"); a("s_lshl_b32 s3, s3, 3"); a("v_add_u32 v11, s3, v11"); a("v_lshlrev_b32 v11, 6, v11"); a(f"v_add_u32 v11, {FL_G+0x4000}, v11")
    a("v_and_b32 v16, 63, v0"); a("v_lshrrev_b32 v17, 1, v16"); a("v_lshlrev_b32 v17, 3, v17"); a("v_and_b32 v16, 1, v16"); a("v_add_u32 v16, v16, v17")
    a("v_add_u32 v16, 6, v16"); a("v_lshlrev_b32 v16, 6, v16"); a(f"v_add_u32 v16, {FL_PK}, v16")
    poll(a,[11,16])
    xstamp(a,'h')
    stamp(a,6)
    ffn.prologue()
    stamp(a,7)
    ffn.main()
    a(f"s_or_b32 s3, s{S_RB}, s{S_J}"); a(f"s_or_b32 s3, s3, s{S_W}")
    a("s_cmp_lg_u32 s3, 0")
    a("s_cbranch_scc1 MEGA_FIN")
    a(f"s_load_dword s4, s[{P_WS}:{P_WS+1}], {WS_FLAGS+FL_E}")
    a("s_waitcnt lgkmcnt(0)")
    a("s_add_u32 s4, s4, 1")
    flag_srd(a)
    a("v_mov_b32 v250, 0"); a("v_mov_b32 v251, s4")
    a("s_mov_b64 exec, 1")
    a("buffer_store_dword v251, v250, s[28:31], 0 offen sc1")
    a("s_mov_b64 exec, -1")
    a.label("MEGA_FIN")
    if PROF:
        a("s_waitcnt vmcnt(0)")
        stamp(a,13)
        stamp_rt(a,9)
        stamp_flush(a)
    a.label("MEGA_END")
    a("s_endpgm")
    return a

if __name__=="__main__":
    s=HEADER+f"; @launch grid=(256,1,1) block=(256,1,1) lds={LDS}\n"
    s+='.amdgcn_target "amdgcn-amd-amdhsa--gfx950"\n'
    s+=kernel_text(NAME+"_kernel",mega(),512,256)
    out=sys.argv[1] if len(sys.argv)>1 else "cdna_kernels/"+NAME+".s"
    open(out,"w").write(s)
    print("written",out,len(s))
```
